```python
import torch

def _softmax(x, axis=-1):
    return torch.softmax(x, dim=axis)
def _gelu(x):
    return torch.nn.functional.gelu(x, approximate="tanh")
def _silu(x):
    return torch.nn.functional.silu(x)
def _sigmoid(x):
    return torch.sigmoid(x)
def _layernorm(x, axis=-1, eps=1e-5):
    m = x.mean(dim=axis, keepdim=True)
    v = x.var(dim=axis, keepdim=True, unbiased=False)
    return (x - m) / torch.sqrt(v + eps)
def _scatter_add(tgt, idx, src, axis=0):
    return tgt.clone().index_add_(axis, idx, src)
def _segment_sum(src, seg, n):
    out = torch.zeros((n,) + src.shape[1:], dtype=src.dtype)
    return out.index_add_(0, seg, src)
def _pad(x, pw):
    flat = tuple(v for pair in reversed(pw) for v in pair)
    return torch.nn.functional.pad(x, flat)

kernel_name = 'interleave_layers__linear_kernel_hedgehog__glu_gated_geglu__prompt'

def setup_inputs():

    _w = (lambda a: (lambda t: t.to(torch.bfloat16) if t.is_floating_point() else t)(torch.as_tensor(a)))
    def _A_setup():
        B, S, D, H = 1, 2048, 448, 16
        Dh = D // H
        return {
            "x": _w((lambda *s: torch.randn(*s, dtype=torch.bfloat16) * 0.05)(B, S, D)),
            "wqkv": _w((lambda *s: torch.randn(*s, dtype=torch.bfloat16) * 0.4)(D, 3 * D)),
            "w_phi": _w((lambda *s: torch.randn(*s, dtype=torch.bfloat16) * 0.4)(H, Dh, Dh) * (Dh ** -0.5)),
            "wo": _w((lambda *s: torch.randn(*s, dtype=torch.bfloat16) * 0.05)(D, D)),
        }
    _A_in = _A_setup()

    def _B_setup():
        B, S, Dm, Df = 1, 2048, 448, 1792
        return {
            "x": _w((lambda *s: torch.randn(*s, dtype=torch.bfloat16) * 0.05)(B, S, Dm)),
            "w_gate": _w((lambda *s: torch.randn(*s, dtype=torch.bfloat16) * 0.8)(Dm, Df) * (Dm ** -0.5)),
            "w_up": _w((lambda *s: torch.randn(*s, dtype=torch.bfloat16) * 0.8)(Dm, Df) * (Dm ** -0.5)),
            "w_down": _w((lambda *s: torch.randn(*s, dtype=torch.bfloat16) * 0.8)(Df, Dm) * (Df ** -0.5)),
        }
    _B_in = _B_setup()

    return {
        "A_x": _A_in["x"],
        "A_wqkv": _A_in["wqkv"],
        "A_w_phi": _A_in["w_phi"],
        "A_wo": _A_in["wo"],
        "B_x": _B_in["x"],
        "B_w_gate": _B_in["w_gate"],
        "B_w_up": _B_in["w_up"],
        "B_w_down": _B_in["w_down"],
    }

def reference(A_x, A_wqkv, A_w_phi, A_wo, B_x, B_w_gate, B_w_up, B_w_down):
    def _A_ref(x, wqkv, w_phi, wo):
        B, S, D = x.shape
        H = 16; Dh = D // H
        qkv = (lambda x, *d: x.permute(*d))((x @ wqkv).reshape(B, S, 3, H, Dh), 2, 0, 3, 1, 4)
        q, k, v = qkv[0], qkv[1], qkv[2]
        pq = torch.einsum("bhsd,hdf->bhsf", q, w_phi)
        pk = torch.einsum("bhsd,hdf->bhsf", k, w_phi)
        phi_q = torch.concatenate([_softmax(pq, axis=-1), _softmax(-pq, axis=-1)], axis=-1)
        phi_k = torch.concatenate([_softmax(pk, axis=-1), _softmax(-pk, axis=-1)], axis=-1)
        kv = torch.einsum("bhsf,bhsd->bhfd", phi_k, v)
        z  = torch.einsum("bhsf->bhf", phi_k)
        num = torch.einsum("bhqf,bhfd->bhqd", phi_q, kv)
        den = torch.einsum("bhqf,bhf->bhq", phi_q, z)[..., None] + 1e-6
        o = num / den
        return (lambda x, *d: x.permute(*d))(o, 0, 2, 1, 3).reshape(B, S, D) @ wo

    def _B_ref(x, w_gate, w_up, w_down):
        g = torch.einsum("bsd,df->bsf", x, w_gate)
        u = torch.einsum("bsd,df->bsf", x, w_up)
        h = _gelu(g) * u
        return torch.einsum("bsf,fd->bsd", h, w_down)

    x = A_x
    x = x + _A_ref(_layernorm(x, axis=-1), A_wqkv, A_w_phi, A_wo)
    x = x + _B_ref(_layernorm(x, axis=-1), B_w_gate, B_w_up, B_w_down)
    x = x + _A_ref(_layernorm(x, axis=-1), A_wqkv, A_w_phi, A_wo)
    x = x + _B_ref(_layernorm(x, axis=-1), B_w_gate, B_w_up, B_w_down)
    return x
```

```python
import re

REG_RE = re.compile(r'(?<![\w.])(-?)(?:abs\()?([vas])(?:\[(\d+):(\d+)\]|(\d+))(?![\w])')


def regs_of(opnd):
    out = set()
    o = opnd.strip()
    if o in ('vcc', 'exec', 'm0', 'scc'):
        return {o}
    if o in ('vcc_lo', 'vcc_hi'):
        return {'vcc'}
    if o in ('exec_lo', 'exec_hi'):
        return {'exec'}
    for m in REG_RE.finditer(o):
        k = m.group(2)
        if m.group(3) is not None:
            for i in range(int(m.group(3)), int(m.group(4)) + 1):
                out.add((k, i))
        else:
            out.add((k, int(m.group(5))))
    return out


TRANS = ('v_exp_f32', 'v_log_f32', 'v_rcp_f32', 'v_rsq_f32', 'v_sqrt_f32', 'v_sin_f32', 'v_cos_f32')


def v(i, n=1):
    return f'v{i}' if n == 1 else f'v[{i}:{i + n - 1}]'


def a(i, n=1):
    return f'a{i}' if n == 1 else f'a[{i}:{i + n - 1}]'


def s(i, n=1):
    return f's{i}' if n == 1 else f's[{i}:{i + n - 1}]'


class Inst:
    __slots__ = ('op', 'opnds', 'mods', 'kind', 'rd', 'wr', 'tok', 'wait', 'cmt', 'nocount', 'size')

    def __init__(self, op, opnds=(), mods='', cmt=''):
        self.op = op
        self.opnds = [str(x) for x in opnds]
        self.mods = mods
        self.cmt = cmt
        self.tok = None
        self.wait = None
        self.nocount = False
        self.classify()

    def classify(self):
        op, o = self.op, self.opnds
        rd, wr = set(), set()
        R = regs_of
        if op.startswith('v_mfma'):
            k = 'mfma'
            wr |= R(o[0])
            for x in o[1:]:
                rd |= R(x)
        elif op.startswith('buffer_load') or op.startswith('global_load'):
            k = 'vmld'
            if 'lds' in self.mods.split() or 'lds' in op:
                for x in o:
                    rd |= R(x)
                rd.add('m0')
                k = 'vmdma'
            else:
                wr |= R(o[0])
                if 'd16' in op:
                    rd |= R(o[0])
                for x in o[1:]:
                    rd |= R(x)
        elif op.startswith('buffer_store') or op.startswith('global_store') or op.startswith('buffer_atomic') or op.startswith('global_atomic'):
            k = 'vmst'
            for x in o:
                rd |= R(x)
        elif op.startswith('ds_read'):
            k = 'dsrd'
            wr |= R(o[0])
            for x in o[1:]:
                rd |= R(x)
        elif op.startswith('ds_'):
            k = 'dswr'
            for x in o:
                rd |= R(x)
        elif op.startswith('s_load') or op in ('s_memtime', 's_memrealtime'):
            k = 'smem'
            wr |= R(o[0])
            for x in o[1:]:
                rd |= R(x)
        elif op in ('s_waitcnt', 's_nop', 's_barrier', 's_sleep', 's_setprio', 's_endpgm'):
            k = op[2:]
        elif op.startswith('s_cbranch') or op == 's_branch':
            k = 'branch'
            if 'vcc' in op:
                rd.add('vcc')
            if 'scc' in op:
                rd.add('scc')
            if 'exec' in op:
                rd.add('exec')
        elif op.startswith('s_cmp') or op.startswith('s_bitcmp'):
            k = 'salu'
            for x in o:
                rd |= R(x)
            wr.add('scc')
        elif op.startswith('s_'):
            k = 'salu'
            wr |= R(o[0])
            for x in o[1:]:
                rd |= R(x)
            if 'saveexec' in op:
                wr.add('exec')
                rd.add('exec')
        elif op.startswith('v_cmp'):
            k = 'valu'
            wr |= R(o[0])
            for x in o[1:]:
                rd |= R(x)
        elif op.startswith('v_permlane') and 'swap' in op:
            k = 'perm'
            wr |= R(o[0]) | R(o[1])
            rd |= R(o[0]) | R(o[1])
        elif op.startswith('v_readfirstlane') or op.startswith('v_readlane'):
            k = 'rdlane'
            wr |= R(o[0])
            for x in o[1:]:
                rd |= R(x)
        elif op.startswith('v_'):
            k = 'valu'
            if op.startswith(TRANS):
                k = 'trans'
            if op.startswith('v_dot2'):
                k = 'dot'
            wr |= R(o[0])
            for x in o[1:]:
                rd |= R(x)
            if op.startswith('v_fmac') or op.startswith('v_dot2c'):
                rd |= R(o[0])
            if op.startswith(('v_add_co', 'v_addc_co', 'v_sub_co')):
                wr |= R(o[1])
        elif op == 'LABEL':
            k = 'label'
        elif op == 'RAW':
            k = 'raw'
        elif op == 'WAIT':
            k = 'wait'
        elif op == 'USE':
            k = 'use'
            for x in o:
                rd |= R(x)
        elif op == 'FENCE':
            k = 'fence'
        else:
            raise ValueError('unknown op ' + op)
        self.kind, self.rd, self.wr = k, rd, wr

    def text(self):
        if self.kind == 'label':
            return f'{self.opnds[0]}:'
        if self.kind == 'raw':
            return self.opnds[0]
        t = '  ' + self.op
        if self.opnds:
            t += ' ' + ', '.join(self.opnds)
        if self.mods:
            t += ' ' + self.mods
        if self.cmt:
            t += '  ; ' + self.cmt
        return t


VALU_KINDS = ('valu', 'trans', 'dot', 'perm', 'rdlane')
VM_KINDS = ('vmld', 'vmdma', 'vmst')
DS_KINDS = ('dsrd', 'dswr')


class Tok:
    pass


class Stream:
    def __init__(self):
        self.L = []

    def __call__(self, op, *opnds, mods='', cmt=''):
        i = Inst(op, opnds, mods, cmt)
        i.tok = Tok()
        self.L.append(i)
        return i.tok

    def label(self, name):
        self.L.append(Inst('LABEL', [name]))

    def raw(self, text):
        self.L.append(Inst('RAW', [text]))

    def wait(self, *toks, vm0=False, lg0=False):
        i = Inst('WAIT')
        flat = []
        for t in toks:
            if t is None:
                continue
            if isinstance(t, (list, tuple)):
                flat += [x for x in t if x is not None]
            else:
                flat.append(t)
        i.wait = (flat, vm0, lg0)
        self.L.append(i)

    def use(self, *opnds):
        self.L.append(Inst('USE', opnds))

    def fence(self):
        self.L.append(Inst('FENCE'))

    def ext(self, other):
        self.L += other.L if isinstance(other, Stream) else other

    def nocount(self, n):
        for i in self.L[-n:]:
            i.nocount = True


def interleave(main, side, per_gap, start=0, cost=None, budget=None):
    out = []
    side = list(side)
    p = 0
    for g, grp in enumerate(main):
        out += grp
        if g >= start:
            n = per_gap(g) if callable(per_gap) else per_gap
            c = 0
            while p < len(side) and c < n:
                ins = side[p]
                w = 2 if ins.kind == 'trans' else (0 if ins.kind in ('wait', 'use') else 1)
                if c + w > n and c > 0:
                    break
                out.append(ins)
                c += w
                p += 1
    return out, side[p:]


def resolve_waits(L):
    out = []
    vm = []
    lg = []
    smem_pending = False
    for i in L:
        if i.kind in VM_KINDS:
            if not i.nocount:
                vm.append(i.tok)
            out.append(i)
        elif i.kind in DS_KINDS:
            if not i.nocount:
                lg.append(i.tok)
            out.append(i)
        elif i.kind == 'smem':
            smem_pending = True
            lg.append(i.tok)
            out.append(i)
        elif i.kind == 'wait':
            toks, vm0, lg0 = i.wait
            nv = nl = None
            if vm0:
                nv = 0
            if lg0:
                nl = 0
            for t in toks:
                if t in vm:
                    n = len(vm) - 1 - vm.index(t)
                    nv = n if nv is None else min(nv, n)
                elif t in lg:
                    n = len(lg) - 1 - lg.index(t)
                    if smem_pending:
                        n = 0
                    nl = n if nl is None else min(nl, n)
            parts = []
            if nv is not None and (vm0 or vm):
                nv = min(nv, 63)
                parts.append(f'vmcnt({nv})')
                vm = vm[len(vm) - nv:] if nv else []
            if nl is not None and (lg0 or lg):
                nl = min(nl, 15)
                parts.append(f'lgkmcnt({nl})')
                lg = lg[len(lg) - nl:] if nl else []
                if nl == 0:
                    smem_pending = False
            if parts:
                out.append(Inst('s_waitcnt', [' '.join(parts)]))
        else:
            if i.kind == 'waitcnt':
                t = i.opnds[0]
                m = re.search(r'vmcnt\((\d+)\)', t)
                if m:
                    n = int(m.group(1))
                    vm = vm[len(vm) - n:] if n else []
                m = re.search(r'lgkmcnt\((\d+)\)', t)
                if m:
                    n = int(m.group(1))
                    lg = lg[len(lg) - n:] if n else []
                    if n == 0:
                        smem_pending = False
            out.append(i)
    return out


def _states(i):
    if i.kind == 'nop':
        return int(i.opnds[0]) + 1
    if i.kind in ('label', 'raw', 'use', 'fence'):
        return 0
    return 1


def _isvec(r):
    return isinstance(r, tuple) and r[0] in 'va'


def _issgpr(r):
    return (isinstance(r, tuple) and r[0] == 's') or r == 'vcc'


def need_states(p, c):
    n = 0
    pk, ck = p.kind, c.kind
    pw = p.wr
    if ck == 'fence':
        if pk == 'mfma':
            return 12
        if pk in VALU_KINDS:
            return 5 if any(_issgpr(r) for r in pw) else 3
        if pk == 'vmst':
            return 2
        if pk == 'salu' and 'm0' in pw:
            return 1
        return 0
    if pk == 'mfma':
        if ck == 'mfma':
            ab = regs_of(c.opnds[1]) | regs_of(c.opnds[2])
            cc = regs_of(c.opnds[3])
            if pw & ab:
                n = max(n, 12)
            if pw & cc:
                n = max(n, 0 if cc == pw else 10)
            elif pw & c.wr:
                n = max(n, 10)
        elif ck in VALU_KINDS or ck in VM_KINDS or ck in DS_KINDS or ck == 'use':
            if pw & (c.rd | c.wr):
                n = max(n, 12)
            if ck in VALU_KINDS and (regs_of(p.opnds[3]) & c.wr):
                n = max(n, 7)
    if pk in VALU_KINDS:
        vw = {r for r in pw if _isvec(r)}
        sw = {r for r in pw if _issgpr(r)}
        if ck == 'mfma' and vw & c.rd:
            n = max(n, 2)
        if ck == 'perm' and vw & c.rd:
            n = max(n, 2)
        if ck == 'rdlane' and vw & c.rd:
            n = max(n, 1)
        if pk == 'trans' and ck in VALU_KINDS and ck != 'trans' and vw & c.rd:
            n = max(n, 1)
        if pk == 'trans' and ck in ('trans',) and vw & c.rd:
            n = max(n, 1)
        if pk == 'dot':
            if ck == 'dot' and c.op == p.op:
                if vw & (regs_of(c.opnds[1]) | regs_of(c.opnds[2])):
                    n = max(n, 3)
            elif (ck in VALU_KINDS or ck in VM_KINDS or ck in DS_KINDS or ck in ('mfma', 'use')) and vw & (c.rd | c.wr):
                n = max(n, 3)
        if sw:
            if (ck in VM_KINDS) and sw & c.rd:
                n = max(n, 5)
            if ck in VALU_KINDS and sw & c.rd:
                n = max(n, 4 if ck == 'rdlane' else 2)
            if ck in ('salu', 'branch', 'smem') and sw & c.rd:
                n = max(n, 2)
    if pk == 'salu':
        if 'm0' in pw and ck in ('vmdma',):
            n = max(n, 1)
        if 'exec' in pw and ck in ('perm', 'rdlane', 'mfma'):
            n = max(n, 1)
    if pk == 'vmst' and ('x4' in p.op or 'x3' in p.op):
        data = regs_of(p.opnds[0]) if p.op.startswith('buffer') else regs_of(p.opnds[1])
        if data & c.wr:
            n = max(n, 2)
    return n


def pad_hazards(L):
    out = []
    for c in L:
        if c.kind not in ('label', 'raw', 'wait'):
            need = 0
            dist = 0
            for p in reversed(out):
                if dist >= 20:
                    break
                if p.kind not in ('label', 'raw', 'use', 'fence'):
                    r = need_states(p, c) - dist
                    if r > need:
                        need = r
                dist += _states(p)
            while need > 0:
                k = min(need, 16)
                out.append(Inst('s_nop', [str(k - 1)]))
                need -= k
        out.append(c)
    return out


def finalize(L):
    L = resolve_waits(L)
    L = pad_hazards(L)
    return [i for i in L if i.kind not in ('use', 'fence')]
```

```python
import sys, math, struct
from dsl import *

NAME = 'interleave_layers__linear_kernel_hedgehog__glu_gated_geglu__prompt'
KNAME = NAME + '_kernel'

OPT = dict(stamps=False, stop=None, force_slow=False)

EPOCH = 0
F_SH = 1024
F_BASE = 4096
WO_ = 0x20000
WGU = WO_ + 14 * 32 * 1024
WDN = WGU + 56 * 2 * 29 * 1024
LB0 = WDN + 14 * 112 * 1024
o_KVP = 0
o_O = o_KVP + 16 * 16 * 4096
o_X1 = o_O + 64 * 32 * 1024
o_ST1 = o_X1 + 64 * 28 * 1024
o_H = o_ST1 + 64 * 14 * 256
o_X2 = o_H + 64 * 112 * 1024
o_ST2 = o_X2 + 64 * 28 * 1024
LSZ = o_ST2 + 64 * 14 * 256
TS = LB0 + 2 * LSZ
WS_USED = TS + 256 * 4 * 256
OOB = 0x7F000000
T_KV, T_O, T_X1, T_H, T_X2 = range(5)


def LB(L):
    return LB0 + L * LSZ


L_WQ = 0
L_IC = 3 * 29 * 1024
L_STG = L_IC + 2048
L_SCR = L_STG + 8192
L_KVS = L_SCR
L_KVF = L_SCR + 32768
L_CSP = L_SCR + 49152
L_RED = L_SCR
L_RING = L_SCR
LDS_BYTES = 163840
assert L_SCR + 4 * 14336 <= LDS_BYTES

S_X, S_WQKV, S_PHI, S_WS, S_OUT, S_SH = 8, 12, 16, 20, 24, 28
S_PWO, S_PWG, S_PWU, S_PWD = 32, 34, 36, 38
S_RB, S_J, S_W, S_TAG, S_FAST, S_XCC, S_TP, S_FP = 40, 41, 42, 43, 44, 45, 46, 47
S_T = 48
S_K10, S_K01, S_K11 = 60, 61, 62
S_CNT = 63
S_LO = 64
S_BWO, S_BWGU, S_BWDN = 66, 67, 68
S_WA = 69
S_SRC = 84
S_DST = 88
S_XDST = 92
S_M = 94
S_PC = 96
SRD = lambda b: s(b, 4)

V_LANE, V_L16, V_L16B, V_L16C = 0, 1, 2, 3
V_ST, V_SL, V_XR, V_L4 = 4, 5, 6, 7
V_T = 8
V_TS = 15
V_RES = 16
V_PHQ = 24
V_U = 40
V_ACC = 64
V_BIG = 128

LOG2E = 1.4426950408889634


def fbits(x):
    return '0x%08x' % struct.unpack('<I', struct.pack('<f', x))[0]


class Gen:
    def __init__(self):
        self.g = Stream()
        self.nlabel = 0
        self.tmp_rr = 0
        self.nstamp = 0
        self.stamp_names = []

    def lab(self, base):
        self.nlabel += 1
        return f'L_{base}_{self.nlabel}'

    def stmp(self):
        r = S_T + self.tmp_rr
        self.tmp_rr = (self.tmp_rr + 1) % 8
        return r

    def lds(self, addr):
        return v(V_L16 + addr // 65536), addr % 65536

    def dsr(self, g, dst, addr):
        b, off = self.lds(addr)
        return g('ds_read_b128', dst, b, mods=f'offset:{off}')

    def dsw(self, g, addr, src):
        b, off = self.lds(addr)
        return g('ds_write_b128', b, src, mods=f'offset:{off}')

    def frag_loads(self, g, items, base, sc1=False):
        toks = []
        cur = None
        sr = None
        for dst, off in items:
            fl = off & ~4095
            if fl != cur:
                if fl == 0:
                    sr = base
                else:
                    sr = self.stmp()
                    g('s_add_u32', s(sr), s(base), hex(fl))
                cur = fl
            toks.append(g('buffer_load_dwordx4', dst, v(V_L16), SRD(S_WS), s(sr),
                          mods=f'offen offset:{off & 4095}' + (' sc1' if sc1 else '')))
        return toks

    def stamp(self, name):
        if not OPT['stamps']:
            return
        g = self.g
        g.wait(lg0=True)
        g('s_memtime', s(98, 2))
        g.wait(lg0=True)
        g('v_writelane_b32', v(V_TS), s(98), self.nstamp)
        self.stamp_names.append(name)
        self.nstamp += 1
        assert self.nstamp <= 60

    def alt_stores(self, stores, always_sc1=False):
        g = self.g
        if always_sc1 or OPT['force_slow']:
            for op, d, vo, srd, so, m in stores:
                g(op, d, vo, srd, so, mods=m + ' sc1')
            return
        l1, l2 = self.lab('slow'), self.lab('join')
        for op, d, vo, srd, so, m in stores:
            g.use(d, vo)
        g('s_cmp_eq_u32', s(S_FAST), 0)
        g('s_cbranch_scc1', l1)
        for op, d, vo, srd, so, m in stores:
            g(op, d, vo, srd, so, mods=m)
        g.nocount(len(stores))
        g('s_branch', l2)
        g.label(l1)
        for op, d, vo, srd, so, m in stores:
            g(op, d, vo, srd, so, mods=m + ' sc1')
        g.label(l2)

    def flag_off(self, L, typ):
        return F_BASE + (L * 5 + typ) * 16 * 128

    def publish(self, L, typ, grp_s, idx_s, always_sc1=False):
        g = self.g
        g.wait(vm0=True, lg0=True)
        g('s_barrier')
        skip = self.lab('pubskip')
        g('s_cmp_lg_u32', s(S_W), 0)
        g('s_cbranch_scc1', skip)
        t = S_T + 8
        g('s_lshl_b32', s(t), s(grp_s), 7)
        g('s_lshl_b32', s(t + 1), s(idx_s), 2)
        g('s_add_u32', s(t), s(t), s(t + 1))
        g('s_add_u32', s(t), s(t), hex(self.flag_off(L, typ)))
        g('v_mov_b32', v(V_T), s(S_TAG))
        g('s_mov_b64', 'exec', 1)
        n0 = len(g.L)
        self.alt_stores([('buffer_store_dword', v(V_T), v(V_L4), SRD(S_WS), s(t), 'offen')], always_sc1)
        for i in g.L[n0:]:
            i.nocount = True
        g('s_mov_b64', 'exec', -1)
        g.fence()
        g.label(skip)

    def poll(self, L, typ, grp_s, count):
        g = self.g
        skip, loop, done = self.lab('pollskip'), self.lab('poll'), self.lab('polldone')
        g.fence()
        g('s_cmp_lg_u32', s(S_W), 0)
        g('s_cbranch_scc1', skip)
        t = S_T + 8
        g('s_lshl_b32', s(t), s(grp_s), 7)
        g('s_add_u32', s(t), s(t), hex(self.flag_off(L, typ)))
        g('s_mov_b32', s(S_CNT), 0)
        g('s_mov_b64', 'exec', hex((1 << count) - 1))
        g.label(loop)
        g('buffer_load_dword', v(V_T), v(V_L4), SRD(S_WS), s(t), mods='offen sc1')
        g.nocount(1)
        g.raw('  s_waitcnt vmcnt(0)')
        g('v_cmp_ne_u32', 'vcc', s(S_TAG), v(V_T))
        g('s_add_u32', s(S_CNT), s(S_CNT), 1)
        g('s_nop', 1)
        g('s_cbranch_vccz', done)
        g('s_cmp_lt_u32', s(S_CNT), 0x40000)
        g('s_cbranch_scc1', loop)
        g.label(done)
        g('s_mov_b64', 'exec', -1)
        g.label(skip)
        g('s_barrier')

    def onehot(self, g, dst, cbase, chained, tmp):
        g('v_and_b32', v(tmp), 1, v(cbase))
        g('v_lshlrev_b32', v(tmp), 4, v(tmp))
        g('v_lshlrev_b32', v(tmp), v(tmp), v(tmp + 2))
        g('v_lshrrev_b32', v(tmp + 1), 1, v(cbase))
        for t in range(2):
            for q in range(4):
                K = 16 * t + (8 * (q // 2) + 2 * (q % 2) if chained else 2 * q)
                g('v_cmp_eq_u32', s(S_T + 2 * q, 2), K // 2, v(tmp + 1))
            for q in range(4):
                g('v_cndmask_b32', v(dst + 4 * t + q), 0, v(tmp), s(S_T + 2 * q, 2))

    def mfma(self, g, d, A, B, c=None):
        return g('v_mfma_f32_32x32x16_bf16', v(d, 16), A, B, v(d, 16) if c is None else c)

    def ln_finish(self, g, S1, S2, T):
        g('v_permlane32_swap_b32', v(S1), v(S2))
        g('v_add_f32', v(S1), v(S1), v(S2))
        g('v_mov_b32', v(S2), v(S1))
        g('v_permlane32_swap_b32', v(S1), v(S2))
        g('v_mul_f32', v(S1), fbits(1.0 / 448), v(S1))
        g('v_mul_f32', v(S2), fbits(1.0 / 448), v(S2))
        g('v_fma_f32', v(S2), f'-{v(S1)}', v(S1), v(S2))
        g('v_max_f32', v(S2), 0, v(S2))
        g('v_cvt_pk_bf16_f32', v(T), f'-{v(S1)}', f'-{v(S1)}')
        g('v_cvt_pk_bf16_f32', v(T + 4), v(S2), v(S2))
        g('v_and_b32', v(T + 4), '0xffff0000', v(T + 4))
        g('v_add_f32', v(T + 4), fbits(1e-5), v(T + 4))
        g('v_cvt_pk_bf16_f32', v(T + 4), v(T + 4), v(T + 4))
        g('v_and_b32', v(T + 4), '0xffff0000', v(T + 4))
        g('v_sqrt_f32', v(T + 4), v(T + 4))
        g('v_cvt_pk_bf16_f32', v(T + 4), v(T + 4), v(T + 4))
        g('v_and_b32', v(T + 3), '0xffff0000', v(T + 4))
        g('v_lshrrev_b32', v(T + 1), 16, v(T + 4))
        g('v_rcp_f32', v(T + 2), v(T + 3))
        g('v_cndmask_b32', v(T), 0, v(T), s(S_LO, 2))
        g('v_cndmask_b32', v(T + 1), 0, v(T + 1), s(S_LO, 2))

    def stat_loads(self, g, dst, st_off):
        t = self.stmp()
        g('s_lshl_b32', s(t), s(S_RB), 2)
        g('s_add_u32', s(t), s(t), s(S_W))
        g('s_mul_i32', s(t), s(t), 14 * 256)
        g('s_add_u32', s(t), s(t), hex(st_off))
        return [g('buffer_load_dwordx2', v(dst + 2 * i, 2), v(V_SL), SRD(S_WS), s(t), mods=f'offen offset:{512 * i} sc1')
                for i in range(7)]

    def stat_sum(self, g, dst):
        g('v_pk_add_f32', v(dst, 2), v(dst, 2), v(dst + 2, 2))
        g('v_pk_add_f32', v(dst + 4, 2), v(dst + 4, 2), v(dst + 6, 2))
        g('v_pk_add_f32', v(dst + 8, 2), v(dst + 8, 2), v(dst + 10, 2))
        g('v_pk_add_f32', v(dst, 2), v(dst, 2), v(dst + 12, 2))
        g('v_pk_add_f32', v(dst + 4, 2), v(dst + 4, 2), v(dst + 8, 2))
        g('v_pk_add_f32', v(dst, 2), v(dst, 2), v(dst + 4, 2))

    def phi(self, g, A, E, T, F, SC, extra=None):
        g('v_max3_f32', v(T), v(A), v(A + 1), v(A + 2))
        g('v_max3_f32', v(T + 1), f'-{v(A)}', f'-{v(A + 1)}', f'-{v(A + 2)}')
        for r in range(3, 13, 2):
            g('v_max3_f32', v(T), v(T), v(A + r), v(A + r + 1))
            g('v_max3_f32', v(T + 1), v(T + 1), f'-{v(A + r)}', f'-{v(A + r + 1)}')
        g('v_max_f32', v(T), v(T), v(A + 13))
        g('v_max_f32', v(T + 1), v(T + 1), f'-{v(A + 13)}')
        g('v_permlane32_swap_b32', v(T), v(T + 1))
        g('v_max_f32', v(T), v(T), v(T + 1))
        g('v_mul_f32', v(T), v(T), v(SC))
        g('v_mov_b32', v(T + 1), v(T))
        g('v_permlane32_swap_b32', v(T), v(T + 1))
        for r in range(0, 14, 2):
            g('v_pk_fma_f32', v(E + r, 2), v(A + r, 2), v(SC, 2), v(T, 2),
              mods='op_sel:[0,0,0] op_sel_hi:[1,0,0] neg_lo:[0,0,1] neg_hi:[0,0,1]')
        for r in range(0, 14, 2):
            g('v_pk_fma_f32', v(A + r, 2), v(A + r, 2), v(SC, 2), v(T, 2),
              mods='op_sel:[0,0,1] op_sel_hi:[1,0,1] neg_lo:[1,0,1] neg_hi:[1,0,1]')
        for r in range(14):
            g('v_exp_f32', v(E + r), v(E + r))
        for r in range(14):
            g('v_exp_f32', v(A + r), v(A + r))
        g('v_pk_add_f32', v(E + 14, 2), v(E, 2), v(E + 2, 2))
        g('v_pk_add_f32', v(A + 14, 2), v(A, 2), v(A + 2, 2))
        for r in range(4, 14, 2):
            g('v_pk_add_f32', v(E + 14, 2), v(E + 14, 2), v(E + r, 2))
            g('v_pk_add_f32', v(A + 14, 2), v(A + 14, 2), v(A + r, 2))
        g('v_add_f32', v(T), v(E + 14), v(E + 15))
        g('v_add_f32', v(T + 1), v(A + 14), v(A + 15))
        g('v_permlane32_swap_b32', v(T), v(T + 1))
        g('v_add_f32', v(T), v(T), v(T + 1))
        g('v_rcp_f32', v(T), v(T))
        if extra is not None:
            g('v_mul_f32', v(T), v(T), v(extra))
        g('v_mov_b32', v(T + 1), v(T))
        g('v_permlane32_swap_b32', v(T), v(T + 1))
        for r in range(0, 14, 2):
            g('v_pk_mul_f32', v(E + r, 2), v(E + r, 2), v(T, 2), mods='op_sel:[0,0] op_sel_hi:[1,0]')
        for r in range(0, 14, 2):
            g('v_pk_mul_f32', v(A + r, 2), v(A + r, 2), v(T, 2), mods='op_sel:[0,1] op_sel_hi:[1,1]')
        for q in range(7):
            g('v_cvt_pk_bf16_f32', v(F + q), v(E + 2 * q), v(E + 2 * q + 1))
        g('v_mov_b32', v(F + 7), 0)
        for q in range(7):
            g('v_cvt_pk_bf16_f32', v(F + 8 + q), v(A + 2 * q), v(A + 2 * q + 1))
        g('v_mov_b32', v(F + 15), 0)

    def pack(self, g, dst, src, n=8):
        for q in range(n):
            g('v_cvt_pk_bf16_f32', v(dst + q), v(src + 2 * q), v(src + 2 * q + 1))

    def wgu_items(self):
        it = []
        for t in range(29):
            it.append((a(4 * t, 4), t * 1024))
            it.append((a(116 + 4 * t, 4), (29 + t) * 1024))
        return it

    def wo_items(self):
        return [(v(192 + (afb * 8 + i) * 4, 4), afb, i * 1024) for i in range(8) for afb in range(2)]

    def wdn_reg(self, i, afb):
        n = 2 * i + afb
        if n < 32:
            return v(128 + 4 * n, 4)
        if n < 38:
            return a(232 + 4 * (n - 32), 4)
        return a(4 * (n - 38), 4)

    def prologue(self):
        g = self.g
        g('s_cmp_ge_u32', 's2', 256)
        g('s_cbranch_scc1', 'L_end')
        g('s_load_dwordx2', s(S_PHI, 2), 's[0:1]', 16)
        g('s_load_dwordx2', s(S_WQKV, 2), 's[0:1]', 8)
        g('s_load_dwordx2', s(S_X, 2), 's[0:1]', 0)
        g('s_load_dwordx2', s(S_WS, 2), 's[0:1]', 80)
        g('s_load_dwordx2', s(S_OUT, 2), 's[0:1]', 64)
        g('s_load_dwordx2', s(S_PWO, 2), 's[0:1]', 24)
        g('s_load_dwordx2', s(S_PWG, 2), 's[0:1]', 40)
        g('s_load_dwordx2', s(S_PWU, 2), 's[0:1]', 48)
        g('s_load_dwordx2', s(S_PWD, 2), 's[0:1]', 56)
        g('s_getpc_b64', s(S_PC, 2))
        g.label('L_pc')
        self.stamp_at_start = True
        g('v_lshrrev_b32', v(V_T), 6, 'v0')
        g('v_and_b32', v(V_LANE), 63, 'v0')
        g('v_readfirstlane_b32', s(S_W), v(V_T))
        g('s_getreg_b32', s(S_XCC), 'hwreg(HW_REG_XCC_ID, 0, 4)')
        g('s_and_b32', s(S_RB), 's2', 7)
        g('s_lshl_b32', s(S_RB), s(S_RB), 1)
        g('s_lshr_b32', s(S_T), 's2', 7)
        g('s_add_u32', s(S_RB), s(S_RB), s(S_T))
        g('s_lshr_b32', s(S_J), 's2', 3)
        g('s_and_b32', s(S_J), s(S_J), 15)
        g('s_cmp_ge_u32', s(S_J), 7)
        g('s_cselect_b32', s(S_TP), 1, 0)
        g('s_mul_i32', s(S_T), s(S_TP), 7)
        g('s_sub_u32', s(S_FP), s(S_J), s(S_T))
        g('s_mov_b32', s(S_K10), '0x3f80')
        g('s_mov_b32', s(S_K01), '0x3f800000')
        g('s_mov_b32', s(S_K11), '0x3f803f80')
        g('s_mov_b32', s(S_LO), -1)
        g('s_mov_b32', s(S_LO + 1), 0)
        g('s_mov_b32', s(S_FAST), 0)
        M, HI, PI = V_T + 1, V_T + 2, V_T + 3
        g('v_lshlrev_b32', v(V_L16), 4, v(V_LANE))
        g('v_add_u32', v(V_L16B), 0x10000, v(V_L16))
        g('v_add_u32', v(V_L16C), 0x20000, v(V_L16))
        g('v_lshlrev_b32', v(V_L4), 2, v(V_LANE))
        g('v_and_b32', v(M), 31, v(V_LANE))
        g('v_lshrrev_b32', v(HI), 5, v(V_LANE))
        g('v_lshlrev_b32', v(V_ST), 3, v(M))
        g('v_lshl_add_u32', v(V_SL), v(HI), 8, v(V_ST))
        g('v_lshl_add_u32', v(V_ST), v(HI), 2, v(V_ST))
        g('v_mul_u32_u24', v(V_XR), 896, v(M))
        g('v_lshl_add_u32', v(V_XR), v(HI), 4, v(V_XR))
        g('v_and_b32', v(PI), 0x13, v(M))
        g('v_and_b32', v(V_T + 4), 4, v(M))
        g('v_lshl_or_b32', v(PI), v(V_T + 4), 1, v(PI))
        g('v_and_b32', v(V_T + 4), 8, v(M))
        g('v_lshrrev_b32', v(V_T + 4), 1, v(V_T + 4))
        g('v_or_b32', v(PI), v(PI), v(V_T + 4))
        VWQ, VPH, H16, DINV = V_U, V_U + 1, V_U + 2, V_U + 3
        g('v_lshlrev_b32', v(H16), 4, v(HI))
        g('v_mul_u32_u24', v(VWQ), 2688, v(PI))
        g('v_add_u32', v(VWQ), v(VWQ), v(H16))
        g('v_mul_u32_u24', v(VPH), 56, v(PI))
        g('v_add_u32', v(VPH), v(VPH), v(H16))
        g('v_cmp_gt_u32', 'vcc', 28, v(PI))
        g('v_mov_b32', v(V_T + 4), hex(OOB))
        g('v_cndmask_b32', v(VPH), v(V_T + 4), v(VPH), 'vcc')
        g('v_add_u32', v(DINV), -2, v(M))
        g('v_cmp_gt_u32', 'vcc', 26, v(M))
        g('v_cndmask_b32', v(DINV), v(DINV), v(M), 'vcc')
        g('v_and_b32', v(V_T + 5), 0x1a, v(M))
        g('v_cmp_eq_u32', 'vcc', 0x1a, v(V_T + 5))
        g('v_cndmask_b32', v(DINV), v(DINV), 64, 'vcc')
        g.wait(lg0=True)
        for b, n in ((S_PHI, 25088), (S_WQKV, 1204224), (S_X, 1835008), (S_WS, WS_USED), (S_OUT, 1835008)):
            g('s_mov_b32', s(b + 2), hex(n))
            g('s_mov_b32', s(b + 3), '0x00020000')
        if OPT['stamps']:
            g('v_mov_b32', v(V_TS), 0)
            self.stamp('start')
        self.tok_epoch = g('s_load_dword', s(S_TAG), s(S_WS, 2), EPOCH, mods='glc')
        g('s_mul_i32', s(S_T), s(S_J), 1568)
        tphi = [g('buffer_load_dwordx4', a(128 + 4 * k, 4), v(VPH), SRD(S_PHI), s(S_T), mods=f'offen offset:{32 * k}') for k in range(2)]
        g('s_mul_i32', s(S_T + 1), s(S_J), 56)
        g('s_mul_i32', s(S_T + 2), s(S_W), 32 * 2688)
        g('s_add_u32', s(S_T + 1), s(S_T + 1), s(S_T + 2))
        twq = {}
        for i in range(4):
            if i:
                g('s_add_u32', s(S_T + 1), s(S_T + 1), 4 * 32 * 2688)
            for p in (1, 2, 0):
                for k in range(2):
                    twq[i, p, k] = g('buffer_load_dwordx4', a((i * 3 + p) * 8 + 4 * k, 4), v(VWQ), SRD(S_WQKV), s(S_T + 1),
                                     mods=f'offen offset:{896 * p + 32 * k}')
        skip = self.lab('nopf')
        g('s_cmp_ge_u32', 's2', 32)
        g('s_cbranch_scc1', skip)
        g('s_lshr_b32', s(S_T), 's2', 3)
        g('s_lshl_b32', s(S_T), s(S_T), 2)
        g('s_add_u32', s(S_T), s(S_T), s(S_W))
        g('s_lshl_b32', s(S_T), s(S_T), 12)
        g('v_lshl_add_u32', v(V_T + 4), v(V_LANE), 6, s(S_T))
        g('v_min_u32', v(V_T + 4), 'L_code_end-L_pc-4', v(V_T + 4))
        g('global_load_dword', a(136), v(V_T + 4), s(S_PC, 2))
        g.nocount(1)
        g.label(skip)
        g('s_lshl_b32', s(S_T), s(S_RB), 2)
        g('s_add_u32', s(S_T), s(S_T), s(S_W))
        g('s_mul_i32', s(S_T), s(S_T), 32 * 896)
        self.tx = [g('buffer_load_dwordx4', v(V_BIG + 4 * t, 4), v(V_XR), SRD(S_X), s(S_T), mods=f'offen offset:{32 * t}') for t in range(28)]
        VSH = V_T + 6
        lgu, lwo, ldone = self.lab('shgu'), self.lab('shwo'), self.lab('shdone')
        g.fence()
        g('s_cmp_lt_u32', 's2', 112)
        g('s_cbranch_scc1', lgu)
        g('s_and_b32', s(S_T), 's2', 1)
        g('s_mul_i32', s(S_T), s(S_T), 7)
        g('s_add_u32', s(S_T), s(S_T), s(S_W))
        g('s_mov_b32', s(S_SRC + 2), hex(OOB))
        g('s_mov_b32', s(S_SRC + 3), hex(OOB))
        g('s_mov_b32', s(S_DST + 2), hex(OOB))
        g('s_mov_b32', s(S_DST + 3), hex(OOB))
        g('s_mov_b32', s(S_XDST), hex(OOB))
        g('s_cmp_ge_u32', 's2', 224)
        g('s_cbranch_scc1', lwo)
        g('s_mov_b64', s(S_SH, 2), s(S_PWD, 2))
        g('s_mov_b32', s(S_SH + 2), hex(1605632))
        g('s_sub_u32', s(S_T + 1), 's2', 112)
        g('s_lshr_b32', s(S_T + 1), s(S_T + 1), 1)
        g('s_mul_i32', s(S_SRC), s(S_T + 1), 32 * 896)
        g('s_lshl_b32', s(S_T + 2), s(S_T), 6)
        g('s_add_u32', s(S_SRC), s(S_SRC), s(S_T + 2))
        g('s_mul_i32', s(S_DST), s(S_T), 112 * 1024)
        g('s_lshl_b32', s(S_T + 1), s(S_T + 1), 11)
        g('s_add_u32', s(S_DST), s(S_DST), s(S_T + 1))
        g('s_add_u32', s(S_DST), s(S_DST), hex(WDN))
        g('s_add_u32', s(S_SRC + 1), s(S_SRC), 4 * 64)
        g('s_add_u32', s(S_DST + 1), s(S_DST), 4 * 112 * 1024)
        g('v_mov_b32', v(VSH), v(V_XR))
        lw3 = self.lab('shw3')
        g('s_branch', lw3)
        g.label(lwo)
        g('s_mov_b64', s(S_SH, 2), s(S_PWO, 2))
        g('s_mov_b32', s(S_SH + 2), hex(401408))
        g('s_sub_u32', s(S_T + 1), 's2', 224)
        g('s_lshr_b32', s(S_T + 1), s(S_T + 1), 1)
        g('s_mul_i32', s(S_SRC), s(S_T + 1), 28 * 896)
        g('s_lshl_b32', s(S_T + 2), s(S_T), 6)
        g('s_add_u32', s(S_SRC), s(S_SRC), s(S_T + 2))
        g('s_mul_i32', s(S_DST), s(S_T), 32 * 1024)
        g('s_lshl_b32', s(S_T + 1), s(S_T + 1), 11)
        g('s_add_u32', s(S_DST), s(S_DST), s(S_T + 1))
        g('s_add_u32', s(S_DST), s(S_DST), hex(WO_))
        g('s_add_u32', s(S_SRC + 1), s(S_SRC), 4 * 64)
        g('s_add_u32', s(S_DST + 1), s(S_DST), 4 * 32 * 1024)
        g('v_mul_u32_u24', v(VSH), 896, v(DINV))
        g('v_add_u32', v(VSH), v(VSH), v(H16))
        g('v_cmp_gt_u32', 'vcc', 64, v(DINV))
        g('v_mov_b32', v(V_T + 4), hex(OOB))
        g('v_cndmask_b32', v(VSH), v(V_T + 4), v(VSH), 'vcc')
        g.label(lw3)
        g('s_cmp_eq_u32', s(S_W), 3)
        g('s_cselect_b32', s(S_SRC + 1), hex(OOB), s(S_SRC + 1))
        g('s_cselect_b32', s(S_DST + 1), hex(OOB), s(S_DST + 1))
        g('s_branch', ldone)
        g.label(lgu)
        g('s_bitcmp1_b32', 's2', 0)
        g('s_cselect_b64', s(S_SH, 2), s(S_PWU, 2), s(S_PWG, 2))
        g('s_mov_b32', s(S_SH + 2), hex(1605632))
        g('s_lshr_b32', s(S_T), 's2', 1)
        g('s_lshl_b32', s(S_T), s(S_T), 6)
        g('s_mul_i32', s(S_SRC), s(S_W), 32 * 3584)
        g('s_add_u32', s(S_SRC), s(S_SRC), s(S_T))
        g('s_mul_i32', s(S_XDST), 's2', 29 * 1024)
        g('s_add_u32', s(S_XDST), s(S_XDST), hex(WGU))
        g('s_lshl_b32', s(S_T), s(S_W), 11)
        g('s_add_u32', s(S_DST), s(S_XDST), s(S_T))
        g('s_add_u32', s(S_XDST), s(S_XDST), 28 * 1024)
        for i in range(1, 4):
            g('s_add_u32', s(S_SRC + i), s(S_SRC + i - 1), 4 * 32 * 3584)
            g('s_add_u32', s(S_DST + i), s(S_DST + i - 1), 8 * 1024)
        g('s_cmp_ge_u32', s(S_W), 2)
        g('s_cselect_b32', s(S_DST + 3), hex(OOB), s(S_DST + 3))
        g('s_cmp_lg_u32', s(S_W), 0)
        g('s_cselect_b32', s(S_XDST), hex(OOB), s(S_XDST))
        g('v_mul_u32_u24', v(VSH), 3584, v(PI))
        g('v_add_u32', v(VSH), v(VSH), v(H16))
        g.label(ldone)
        g('s_mov_b32', s(S_SH + 3), '0x00020000')
        self.tsh = [[g('buffer_load_dwordx4', a(96 + 8 * i + 4 * k, 4), v(VSH), SRD(S_SH), s(S_SRC + i), mods=f'offen offset:{32 * k}')
                     for k in range(2)] for i in range(4)]
        g('s_lshl_b32', s(S_T), s(S_J), 2)
        g('s_add_u32', s(S_T), s(S_T), s(S_W))
        g('s_mul_i32', s(S_BWGU), s(S_T), 2 * 29 * 1024)
        g('s_add_u32', s(S_BWGU), s(S_BWGU), hex(WGU))
        g('s_lshr_b32', s(S_T + 1), s(S_W), 1)
        g('s_lshl_b32', s(S_T), s(S_FP), 1)
        g('s_add_u32', s(S_T), s(S_T), s(S_T + 1))
        g('s_mul_i32', s(S_BWO), s(S_T), 32 * 1024)
        g('s_lshl_b32', s(S_T + 2), s(S_W), 13)
        g('s_add_u32', s(S_BWO), s(S_BWO), s(S_T + 2))
        g('s_add_u32', s(S_BWO), s(S_BWO), hex(WO_))
        g('s_mul_i32', s(S_BWDN), s(S_T), 112 * 1024)
        g('s_mul_i32', s(S_T + 2), s(S_W), 28 * 1024)
        g('s_add_u32', s(S_BWDN), s(S_BWDN), s(S_T + 2))
        g('s_add_u32', s(S_BWDN), s(S_BWDN), hex(WDN))
        g('s_cmp_ge_u32', s(S_J), 14)
        g('s_cselect_b32', s(S_BWGU), hex(OOB), s(S_BWGU))
        g('s_cselect_b32', s(S_BWO), hex(OOB), s(S_BWO))
        g('s_cselect_b32', s(S_BWDN), hex(OOB), s(S_BWDN))
        VS, VP, VIN = 44, 52, 24
        VIC = 32
        tmp = V_T + 4
        tmp = 60
        g('v_mov_b32', v(tmp + 2), '0x3f80')
        g('v_lshlrev_b32', v(V_T + 4), 3, v(HI))
        g('v_sub_u32', v(V_T + 5), v(DINV), v(V_T + 4))
        self.onehot(g, VS, V_T + 5, False, tmp)
        g('v_sub_u32', v(V_T + 5), v(M), v(V_T + 4))
        self.onehot(g, VIN, V_T + 5, False, tmp)
        g('v_lshlrev_b32', v(V_T + 4), 2, v(HI))
        g('v_sub_u32', v(V_T + 5), v(M), v(V_T + 4))
        self.onehot(g, VIC, V_T + 5, True, tmp)
        self.dsw(g, L_IC, v(VIC, 4))
        self.dsw(g, L_IC + 1024, v(VIC + 4, 4))
        g('v_and_b32', v(V_T + 4), 0x3b, v(V_LANE))
        g('v_cmp_eq_u32', 'vcc', 26, v(V_T + 4))
        g('v_cndmask_b32', v(63), 0, v(tmp + 2), 'vcc')
        g('s_cmp_ge_u32', s(S_W), 2)
        g('s_cselect_b32', s(S_T), -1, 0)
        g('v_and_b32', v(63), s(S_T), v(63))
        g.wait(tphi)
        self.mfma(g, V_ACC, a(128, 4), v(VS, 4), 0)
        self.mfma(g, V_ACC, a(132, 4), v(VS + 4, 4))
        self.pack(g, VP, V_ACC)
        CS = 60
        for p in range(3):
            g('v_mov_b32', v(CS + p), 0)
        VW = V_T + 4
        g('s_lshl_b32', s(S_T), s(S_W), 11)
        g('v_add_u32', v(VW), s(S_T), v(V_L16))
        g('v_add_u32', v(VW + 1), 0x10000, v(VW))
        units = [(i, p) for i in range(4) for p in (1, 2, 0)]
        PK = [40, 32]
        PK = [112, 120]

        def unit_mm(u):
            i, p = units[u]
            d = V_ACC + 16 * (u % 3)
            B = VP if p < 2 else VS
            g.wait(twq[i, p, 0], twq[i, p, 1])
            self.mfma(g, d, a((i * 3 + p) * 8, 4), v(B, 4), 0)
            self.mfma(g, d, a((i * 3 + p) * 8 + 4, 4), v(B + 4, 4))

        def unit_fin(u):
            i, p = units[u]
            d = V_ACC + 16 * (u % 3)
            pk = PK[u % 2]
            self.pack(g, pk, d)
            for t in range(2):
                addr = L_WQ + (p * 29 + 8 * i + t) * 1024
                g('ds_write_b128', v(VW + addr // 65536), v(pk + 4 * t, 4), mods=f'offset:{addr % 65536}')
            for q in range(8):
                g('v_dot2_f32_bf16', v(CS + p), v(pk + q), s(S_K11), v(CS + p))

        unit_mm(0)
        for u in range(9):
            if u + 1 < 9:
                unit_mm(u + 1)
            unit_fin(u)
        skip = self.lab('wq4')
        g.fence()
        g('s_cmp_ge_u32', s(S_W), 2)
        g('s_cbranch_scc1', skip)
        unit_mm(9)
        for u in range(9, 12):
            if u + 1 < 12:
                unit_mm(u + 1)
            unit_fin(u)
        g.fence()
        g.label(skip)
        g('s_mul_i32', s(S_T), s(S_W), 768)
        g('s_add_u32', s(S_T), s(S_T), hex(L_CSP))
        g('v_add_u32', v(VW), s(S_T), v(V_L4))
        for p in range(3):
            g('ds_write_b32', v(VW), v(CS + p), mods=f'offset:{256 * p}')
        g.wait(lg0=True)
        g('s_add_u32', s(S_TAG), s(S_TAG), 16)
        g('s_barrier')
        self.stamp('wq')
        g('s_min_u32', s(S_T), s(S_W), 2)
        g('s_lshl_b32', s(S_T + 1), s(S_T), 8)
        g('s_add_u32', s(S_T + 1), s(S_T + 1), hex(L_CSP))
        g('v_and_b32', v(VW), 31, v(V_LANE))
        g('v_lshl_add_u32', v(VW), v(VW), 2, s(S_T + 1))
        R = 40
        tk = [g('ds_read2_b32', v(R + 2 * k, 2), v(VW), mods=f'offset0:{192 * k} offset1:{192 * k + 32}') if 192 * k + 32 < 256 else None for k in range(2)]
        g('v_add_u32', v(VW), 1536, v(VW))
        tk += [g('ds_read2_b32', v(R + 4 + 2 * k, 2), v(VW), mods=f'offset0:{192 * k} offset1:{192 * k + 32}') for k in range(2)]
        g.wait(tk)
        self.cs_frag(g, R, 63)
        g('s_mul_i32', s(S_T), s(S_T), 29 * 1024)
        g('s_add_u32', s(S_T), s(S_T), 28 * 1024 + L_WQ)
        g('v_add_u32', v(VW), s(S_T), v(V_L16))
        g('ds_write_b128', v(VW), v(R, 4))
        self.VIN = VIN

    def cs_frag(self, g, R, sel):
        g('v_pk_add_f32', v(R, 2), v(R, 2), v(R + 2, 2))
        g('v_pk_add_f32', v(R + 4, 2), v(R + 4, 2), v(R + 6, 2))
        g('v_pk_add_f32', v(R, 2), v(R, 2), v(R + 4, 2))
        g('v_add_f32', v(R), v(R), v(R + 1))
        g('v_cvt_pk_bf16_f32', v(R + 1), v(R), v(R))
        g('v_and_b32', v(R + 1), '0xffff0000', v(R + 1))
        g('v_sub_f32', v(R + 1), v(R), v(R + 1))
        g('v_cvt_pk_bf16_f32', v(R), v(R), v(R + 1))
        g('v_cndmask_b32', v(R), 0, v(R), s(S_LO, 2))
        if sel is None:
            g('v_mov_b32', v(R + 1), 0)
        else:
            g('v_mov_b32', v(R + 1), v(sel))
        g('v_mov_b32', v(R + 2), 0)
        g('v_mov_b32', v(R + 3), 0)

    def phase_q(self, L):
        g = self.g
        AK, AV, RING = V_ACC, V_ACC + 16, V_ACC + 32
        XF = V_BIG
        EXT = V_BIG + 112
        RS, SC = EXT + 2 + 4, EXT + 8
        VR, VSC = 246, 248
        if L == 0:
            tx = self.tx
            S1, S2 = 250, 251
            g('v_mov_b32', v(S1), 0)
            g('v_mov_b32', v(S2), 0)
        else:
            ST = 40
            tst = self.stat_loads(g, ST, LB(0) + o_ST2)
            t = self.stmp()
            g('s_lshl_b32', s(S_WA), s(S_RB), 2)
            g('s_add_u32', s(S_WA), s(S_WA), s(S_W))
            g('s_mul_i32', s(S_WA), s(S_WA), 28 * 1024)
            g('s_add_u32', s(S_WA), s(S_WA), hex(LB(0) + o_X2))
            tx = self.frag_loads(g, [(v(XF + 4 * t, 4), 1024 * t) for t in range(28)], S_WA, sc1=True)
            S1, S2 = ST, ST + 1

        def finish_stats():
            self.ln_finish(g, S1, S2, EXT)
            g('v_mov_b32', v(VR), v(EXT + 2))
            g('v_mul_f32', v(VSC), fbits(LOG2E), v(EXT + 2))
            g('v_mov_b32', v(EXT + 2), 0)
            g('v_mov_b32', v(EXT + 3), 0)

        D = 3
        rd = {}

        def reads(t):
            for k, p in enumerate((1, 2)):
                rd[t, k] = self.dsr(g, v(RING + 8 * (t % 4) + 4 * k, 4), L_WQ + (p * 29 + t) * 1024)

        for t in range(D):
            reads(t)
        if L == 1:
            g.wait(tst)
            self.stat_sum(g, ST)
            finish_stats()
        for t in range(28):
            g.wait(tx[t], rd[t, 0], rd[t, 1])
            self.mfma(g, AK, v(RING + 8 * (t % 4), 4), v(XF + 4 * t, 4), 0 if t == 0 else None)
            self.mfma(g, AV, v(XF + 4 * t, 4), v(RING + 8 * (t % 4) + 4, 4), 0 if t == 0 else None)
            if t + D < 28:
                reads(t + D)
            if L == 0:
                for q in range(4):
                    g('v_dot2_f32_bf16', v(S1), v(XF + 4 * t + q), s(S_K11), v(S1))
                    g('v_dot2_f32_bf16', v(S2), v(XF + 4 * t + q), v(XF + 4 * t + q), v(S2))
        if L == 0:
            g.wait(lg0=True)
            g('s_barrier')
        reads(28)
        IC = RING + 8 * (29 % 4)
        tic = [self.dsr(g, v(IC + 4 * k, 4), L_IC + 1024 * k) for k in range(2)]
        if L == 0:
            finish_stats()
        g.wait(rd[28, 0], rd[28, 1])
        self.mfma(g, AK, v(RING + 8 * (28 % 4), 4), v(EXT, 4))
        self.mfma(g, AV, v(EXT, 4), v(RING + 8 * (28 % 4) + 4, 4))
        self.stamp(f'qmm{L}')
        E, F, T = 40, V_PHQ, V_T if L else V_T
        F = 112
        self.phi(g, AK, E, V_T, F, VSC, extra=VR)
        DP, DM = AK, E
        g.wait(tic)
        self.mfma(g, DP, v(F, 4), v(IC, 4), 0)
        self.mfma(g, DM, v(F + 8, 4), v(IC, 4), 0)
        self.mfma(g, DP, v(F + 4, 4), v(IC + 4, 4))
        self.mfma(g, DM, v(F + 12, 4), v(IC + 4, 4))
        VV = 56
        self.pack(g, VV, AV)
        G = 96
        self.pack(g, G, DP)
        self.pack(g, G + 8, DM)
        KP, KM = AK, AV
        self.mfma(g, KP, v(G, 4), v(VV, 4), 0)
        self.mfma(g, KM, v(G + 8, 4), v(VV, 4), 0)
        self.mfma(g, KP, v(G + 4, 4), v(VV + 4, 4))
        self.mfma(g, KM, v(G + 12, 4), v(VV + 4, 4))
        VW = V_T + 4
        g('s_lshl_b32', s(S_T + 8), s(S_W), 13)
        g('s_add_u32', s(S_T + 8), s(S_T + 8), hex(L_KVS))
        g('v_add_u32', v(VW), s(S_T + 8), v(V_L16))
        g('s_lshl_b32', s(S_T + 8), s(S_W), 11)
        g('s_add_u32', s(S_T + 8), s(S_T + 8), hex(L_KVS))
        g('v_add_u32', v(VW + 1), s(S_T + 8), v(V_L16))
        for k in range(8):
            g('ds_write_b128', v(VW), v(KP + 4 * k, 4), mods=f'offset:{1024 * k}')
        g.wait(lg0=True)
        g('s_barrier')
        R = 96
        tk = [g('ds_read_b128', v(R + 4 * k, 4), v(VW + 1), mods=f'offset:{8192 * (k // 2) + 1024 * (k % 2)}') for k in range(8)]
        g('s_lshl_b32', s(S_T + 8), s(S_J), 16)
        g('s_lshl_b32', s(S_T + 9), s(S_RB), 12)
        g('s_add_u32', s(S_T + 8), s(S_T + 8), s(S_T + 9))
        g('s_lshl_b32', s(S_T + 9), s(S_W), 10)
        g('s_add_u32', s(S_T + 8), s(S_T + 8), s(S_T + 9))
        g('s_add_u32', s(S_T + 8), s(S_T + 8), hex(LB(L) + o_KVP))
        g.wait(tk[:4])
        for q in range(4):
            g('v_pk_add_f32', v(R + 2 * q, 2), v(R + 2 * q, 2), v(R + 8 + 2 * q, 2))
        g.wait(tk[4:])
        for q in range(4):
            g('v_pk_add_f32', v(R + 16 + 2 * q, 2), v(R + 16 + 2 * q, 2), v(R + 24 + 2 * q, 2))
        for q in range(4):
            g('v_pk_add_f32', v(R + 2 * q, 2), v(R + 2 * q, 2), v(R + 16 + 2 * q, 2))
        self.pack(g, R + 8, R, 4)
        g('buffer_store_dwordx4', v(R + 8, 4), v(V_L16), SRD(S_WS), s(S_T + 8), mods='offen sc1')
        self.publish(L, T_KV, S_J, S_RB, always_sc1=True)
        self.stamp(f'kvpub{L}')
        if L == 0:
            self.shuffle()
            self.stamp('shuf')
        AQ = AK
        rq = {}
        QR = V_ACC + 32
        for t in range(4):
            rq[t] = self.dsr(g, v(QR + 4 * (t % 8), 4), L_WQ + t * 1024)
        for t in range(29):
            g.wait(rq[t])
            self.mfma(g, AQ, v(QR + 4 * (t % 8), 4), v(XF + 4 * t, 4), 0 if t == 0 else None)
            if t + 4 < 29:
                rq[t + 4] = self.dsr(g, v(QR + 4 * ((t + 4) % 8), 4), L_WQ + (t + 4) * 1024)
        self.phi(g, AQ, E, V_T, V_PHQ, VSC)
        self.stamp(f'phiq{L}')
        if L == 0:
            self.poll_shuffle()
            g('s_lshl_b32', s(S_T + 8), s(S_RB), 2)
            g('s_add_u32', s(S_T + 8), s(S_T + 8), s(S_TP))
            g('s_and_b32', s(S_T + 9), s(S_W), 1)
            g('s_lshl_b32', s(S_T + 9), s(S_T + 9), 1)
            g('s_add_u32', s(S_T + 8), s(S_T + 8), s(S_T + 9))
            g('s_mul_i32', s(S_T + 8), s(S_T + 8), 32 * 896)
            g('s_lshl_b32', s(S_T + 9), s(S_FP), 7)
            g('s_add_u32', s(S_T + 8), s(S_T + 8), s(S_T + 9))
            g('s_lshr_b32', s(S_T + 9), s(S_W), 1)
            g('s_lshl_b32', s(S_T + 9), s(S_T + 9), 6)
            g('s_add_u32', s(S_T + 8), s(S_T + 8), s(S_T + 9))
            g('v_lshrrev_b32', v(V_T), 5, v(V_LANE))
            g('v_lshlrev_b32', v(V_T), 3, v(V_T))
            g('v_sub_u32', v(V_T), v(V_XR), v(V_T))
            self.tres = [g('buffer_load_dwordx2', v(V_RES + 2 * jj, 2), v(V_T), SRD(S_X), s(S_T + 8), mods=f'offen offset:{16 * jj}')
                         for jj in range(4)]
        self.two = self.wo_loads()
        self.wgu_q = self.wgu_items()
        self.twgu = {}
        self.wgu_issue(14)
        self.poll(L, T_KV, S_J, 16)
        self.stamp(f'kvok{L}')

    def wo_loads(self):
        g = self.g
        b1 = S_T + 8
        g('s_cmp_lt_u32', s(S_W), 2)
        g('s_cselect_b32', s(b1), 1, -1)
        g('s_mul_i32', s(b1), s(b1), hex(32 * 1024))
        g('s_add_u32', s(b1), s(b1), s(S_BWO))
        toks = {}
        for afb in range(2):
            items = [(v(192 + (afb * 8 + i) * 4, 4), i * 1024) for i in range(8)]
            tk = self.frag_loads(g, items, S_BWO if afb == 0 else b1)
            for i in range(8):
                toks[afb, i] = tk[i]
        return toks

    def wgu_issue(self, n, g=None):
        g = g or self.g
        it, self.wgu_q = self.wgu_q[:n], self.wgu_q[n:]
        it = sorted(it, key=lambda x: x[1])
        tk = self.frag_loads(g, it, S_BWGU)
        for (d, off), t in zip(it, tk):
            self.twgu[off // 1024] = t

    def shuffle(self):
        g = self.g
        VIN = self.VIN
        CS = 60
        g('v_mov_b32', v(CS), 0)
        PK = [96, 104, 112, 120]
        DD = [V_ACC, V_ACC + 16]

        def mm(i):
            g.wait(self.tsh[i])
            self.mfma(g, DD[i % 2], a(96 + 8 * i, 4), v(VIN, 4), 0)
            self.mfma(g, DD[i % 2], a(96 + 8 * i + 4, 4), v(VIN + 4, 4))

        mm(0)
        for i in range(4):
            if i + 1 < 4:
                mm(i + 1)
            self.pack(g, PK[i], DD[i % 2])
            for t in range(2):
                g('buffer_store_dwordx4', v(PK[i] + 4 * t, 4), v(V_L16), SRD(S_WS), s(S_DST + i), mods=f'offen offset:{1024 * t} sc1')
            for q in range(8):
                g('v_dot2_f32_bf16', v(CS), v(PK[i] + q), s(S_K11), v(CS))
        VW = V_T + 4
        g('s_lshl_b32', s(S_T + 8), s(S_W), 8)
        g('s_add_u32', s(S_T + 8), s(S_T + 8), hex(L_CSP))
        g('v_add_u32', v(VW), s(S_T + 8), v(V_L4))
        g('ds_write_b32', v(VW), v(CS))
        g('v_and_b32', v(VW), 31, v(V_LANE))
        g('v_lshlrev_b32', v(VW), 2, v(VW))
        g('v_add_u32', v(VW), hex(L_CSP), v(VW))
        g.wait(lg0=True)
        g('s_barrier')
        R = 40
        tk = [g('ds_read2_b32', v(R + 2 * k, 2), v(VW), mods=f'offset0:{64 * k} offset1:{64 * k + 32}') for k in range(4)]
        g.wait(tk)
        self.cs_frag(g, R, None)
        g('buffer_store_dwordx4', v(R, 4), v(V_L16), SRD(S_WS), s(S_XDST), mods='offen sc1')
        g.wait(vm0=True, lg0=True)
        g('s_barrier')
        skip = self.lab('shpub')
        g('s_cmp_lg_u32', s(S_W), 0)
        g('s_cbranch_scc1', skip)
        g('s_add_u32', s(S_T + 8), s(S_TAG), s(S_XCC))
        g('v_mov_b32', v(V_T), s(S_T + 8))
        g('s_lshl_b32', s(S_T + 8), 's2', 2)
        g('s_mov_b64', 'exec', 1)
        g('buffer_store_dword', v(V_T), v(V_L4), SRD(S_WS), s(S_T + 8), mods=f'offen offset:{F_SH} sc1')
        g.nocount(1)
        g('s_mov_b64', 'exec', -1)
        g.fence()
        g.label(skip)

    def poll_shuffle(self):
        g = self.g
        loop, done = self.lab('shpoll'), self.lab('shdone')
        P = 40
        g.fence()
        g('s_mov_b32', s(S_CNT), 0)
        g.label(loop)
        g('buffer_load_dwordx4', v(P, 4), v(V_L16), SRD(S_WS), 0, mods=f'offen offset:{F_SH} sc1')
        g.nocount(1)
        g.raw('  s_waitcnt vmcnt(0)')
        for k in range(4):
            g('v_subrev_u32', v(P + k), s(S_TAG), v(P + k))
        g('v_or3_b32', v(P + 4), v(P), v(P + 1), v(P + 2))
        g('v_or_b32', v(P + 4), v(P + 4), v(P + 3))
        g('v_cmp_lt_u32', 'vcc', 15, v(P + 4))
        g('s_add_u32', s(S_CNT), s(S_CNT), 1)
        g('s_nop', 1)
        g('s_cbranch_vccz', done)
        g('s_cmp_lt_u32', s(S_CNT), 0x40000)
        g('s_cbranch_scc1', loop)
        g.label(done)
        g.wait(vm0=True)
        g('s_and_b32', s(S_T + 8), 's2', 3)
        for k in range(1, 4):
            g('s_cmp_eq_u32', s(S_T + 8), k)
            g('s_cselect_b64', s(S_M, 2), -1, 0)
            g('v_cndmask_b32', v(P), v(P), v(P + k), s(S_M, 2))
        g('v_cmp_ne_u32', 'vcc', s(S_XCC), v(P))
        g('s_mov_b32', s(S_T + 8), '0x55555555')
        g('s_lshr_b32', s(S_T + 9), 's2', 2)
        g('s_and_b32', s(S_T + 9), s(S_T + 9), 1)
        g('s_lshl_b32', s(S_T + 8), s(S_T + 8), s(S_T + 9))
        g('s_cmp_ge_u32', 's2', 128)
        g('s_cselect_b32', s(S_T + 9), 'vcc_hi', 'vcc_lo')
        g('s_and_b32', s(S_T + 9), s(S_T + 9), s(S_T + 8))
        g('s_cmp_eq_u32', s(S_T + 9), 0)
        g('s_cselect_b32', s(S_FAST), 1, 0)
        skip = self.lab('noep')
        g('s_or_b32', s(S_T + 8), 's2', s(S_W))
        g('s_cmp_lg_u32', s(S_T + 8), 0)
        g('s_cbranch_scc1', skip)
        g('v_mov_b32', v(V_T), s(S_TAG))
        g('s_mov_b64', 'exec', 1)
        g('buffer_store_dword', v(V_T), v(V_L4), SRD(S_WS), 0, mods=f'offen offset:{EPOCH} sc1')
        g.nocount(1)
        g('s_mov_b64', 'exec', -1)
        g.raw('  s_waitcnt vmcnt(0)')
        g.fence()
        g.label(skip)

    def phase_o(self, L):
        g = self.g
        PF = V_BIG
        g('s_lshl_b32', s(S_WA), s(S_J), 16)
        g('s_lshl_b32', s(S_T + 8), s(S_W), 10)
        g('s_add_u32', s(S_WA), s(S_WA), s(S_T + 8))
        g('s_add_u32', s(S_WA), s(S_WA), hex(LB(L) + o_KVP))
        tp = self.frag_loads(g, [(v(PF + 4 * n, 4), 4096 * n) for n in range(16)], S_WA, sc1=True)
        self.wgu_issue(12)
        S = 40
        for n in range(16):
            g.wait(tp[n])
            for q in range(4):
                g('v_dot2_f32_bf16', v(S + 2 * q), v(PF + 4 * n + q), s(S_K10), v(S + 2 * q) if n else 0)
                g('v_dot2_f32_bf16', v(S + 2 * q + 1), v(PF + 4 * n + q), s(S_K01), v(S + 2 * q + 1) if n else 0)
        self.pack(g, S + 8, S, 4)
        g('s_lshl_b32', s(S_T + 8), s(S_W), 10)
        g('s_add_u32', s(S_T + 8), s(S_T + 8), hex(L_KVF))
        g('v_add_u32', v(V_T), s(S_T + 8), v(V_L16))
        g('ds_write_b128', v(V_T), v(S + 8, 4))
        g.wait(lg0=True)
        g('s_barrier')
        KV = 96
        tk = [self.dsr(g, v(KV + 4 * k, 4), L_KVF + 1024 * k) for k in range(4)]
        O = V_ACC
        g('s_lshl_b32', s(S_T + 8), s(S_RB), 2)
        g('s_add_u32', s(S_T + 8), s(S_T + 8), s(S_W))
        g('s_lshl_b32', s(S_T + 8), s(S_T + 8), 15)
        g('s_lshl_b32', s(S_T + 9), s(S_J), 11)
        g('s_add_u32', s(S_T + 8), s(S_T + 8), s(S_T + 9))
        g('s_add_u32', s(S_T + 8), s(S_T + 8), hex(LB(L) + o_O))
        for k in range(4):
            g.wait(tk[k])
            self.mfma(g, O, v(KV + 4 * k, 4), v(V_PHQ + 4 * k, 4), 0 if k == 0 else None)
        g('v_add_f32', v(V_T), fbits(1e-6), v(O + 14))
        g('v_rcp_f32', v(V_T), v(V_T))
        g('v_mov_b32', v(S + 7), 0)
        for r in range(0, 14, 2):
            g('v_pk_mul_f32', v(O + r, 2), v(O + r, 2), v(V_T, 2), mods='op_sel:[0,0] op_sel_hi:[1,0]')
        self.pack(g, S, O, 7)
        self.alt_stores([('buffer_store_dwordx4', v(S + 4 * t, 4), v(V_L16), SRD(S_WS), s(S_T + 8), f'offen offset:{1024 * t}') for t in range(2)])
        self.publish(L, T_O, S_RB, S_J)
        self.stamp(f'opub{L}')

    def tb_base(self, dst, stride, const, atb):
        g = self.g
        g('s_and_b32', s(dst), s(S_W), 1)
        if atb:
            g('s_xor_b32', s(dst), s(dst), 1)
        g('s_lshl_b32', s(dst), s(dst), 1)
        g('s_add_u32', s(dst), s(dst), s(S_TP))
        g('s_lshl_b32', s(S_T + 11), s(S_RB), 2)
        g('s_add_u32', s(dst), s(dst), s(S_T + 11))
        g('s_mul_i32', s(dst), s(dst), hex(stride))
        if const:
            g('s_add_u32', s(dst), s(dst), hex(const))

    def reduce_epilogue(self, L, x_off, st_off, final):
        g = self.g
        A = V_ACC
        VW = V_T + 3
        for aa in range(1, 4):
            g('s_xor_b32', s(S_T + 8), s(S_W), (aa >> 1) * 2 + (aa & 1))
            g('s_mul_i32', s(S_T + 8), s(S_T + 8), 12288)
            g('s_add_u32', s(S_T + 8), s(S_T + 8), hex(L_RED + 4096 * (aa - 1)))
            g('v_add_u32', v(VW + aa - 1), s(S_T + 8), v(V_L16))
        g('s_mul_i32', s(S_T + 8), s(S_W), 12288)
        g('s_add_u32', s(S_T + 8), s(S_T + 8), hex(L_RED))
        g('v_add_u32', v(VW + 3), s(S_T + 8), v(V_L16))
        for aa in range(1, 4):
            for k in range(4):
                g('ds_write_b128', v(VW + aa - 1), v(A + 16 * aa + 4 * k, 4), mods=f'offset:{1024 * k}')
        for q in range(8):
            g('v_dot2_f32_bf16', v(A + 2 * q), v(V_RES + q), s(S_K10), v(A + 2 * q))
            g('v_dot2_f32_bf16', v(A + 2 * q + 1), v(V_RES + q), s(S_K01), v(A + 2 * q + 1))
        g.wait(lg0=True)
        g('s_barrier')
        tk = [g('ds_read_b128', v(A + 16 + 4 * k, 4), v(VW + 3), mods=f'offset:{1024 * k}') for k in range(12)]
        fbw = S_T + 9
        g('s_lshl_b32', s(fbw), s(S_FP), 1)
        g('s_lshr_b32', s(S_T + 8), s(S_W), 1)
        g('s_add_u32', s(fbw), s(fbw), s(S_T + 8))
        if final:
            self.tb_base(S_T + 8, 32 * 896, 0, 0)
            g('s_lshl_b32', s(fbw), s(fbw), 6)
            g('s_add_u32', s(S_T + 8), s(S_T + 8), s(fbw))
        else:
            self.tb_base(S_T + 8, 28 * 1024, x_off, 0)
            self.tb_base(S_T + 10, 14 * 256, st_off, 0)
            g('s_lshl_b32', s(S_T + 11), s(fbw), 11)
            g('s_add_u32', s(S_T + 8), s(S_T + 8), s(S_T + 11))
            g('s_lshl_b32', s(S_T + 11), s(fbw), 8)
            g('s_add_u32', s(S_T + 10), s(S_T + 10), s(S_T + 11))
        for b in range(3):
            g.wait(tk[4 * b:4 * b + 4])
            for q in range(8):
                g('v_pk_add_f32', v(A + 2 * q, 2), v(A + 2 * q, 2), v(A + 16 + 16 * b + 2 * q, 2))
        N = 40
        self.pack(g, N, A)
        if not final:
            self.pack(g, V_RES, A)
        for k in (0, 1, 4, 5):
            g('v_permlane32_swap_b32', v(N + k), v(N + k + 2))
        if final:
            for t in range(2):
                g('buffer_store_dwordx4', v(N + 4 * t, 4), v(V_XR), SRD(S_OUT), s(S_T + 8), mods=f'offen offset:{32 * t}')
            return
        S1, S2 = V_T, V_T + 1
        for q in range(8):
            g('v_dot2_f32_bf16', v(S1), v(V_RES + q), s(S_K11), v(S1) if q else 0)
            g('v_dot2_f32_bf16', v(S2), v(V_RES + q), v(V_RES + q), v(S2) if q else 0)
        g('v_permlane32_swap_b32', v(S1), v(S2))
        g('v_add_f32', v(S1), v(S1), v(S2))
        self.alt_stores([('buffer_store_dwordx4', v(N + 4 * t, 4), v(V_L16), SRD(S_WS), s(S_T + 8), f'offen offset:{1024 * t}') for t in range(2)]
                        + [('buffer_store_dword', v(S1), v(V_ST), SRD(S_WS), s(S_T + 10), 'offen')])

    def phase_wo(self, L):
        g = self.g
        self.wgu_issue(10)
        self.poll(L, T_O, S_RB, 16)
        self.stamp(f'ook{L}')
        OF = V_BIG
        to = {}
        for atb in range(2):
            self.tb_base(S_WA, 32 * 1024, LB(L) + o_O, atb)
            g('s_lshl_b32', s(S_T + 8), s(S_W), 13)
            g('s_add_u32', s(S_WA), s(S_WA), s(S_T + 8))
            tk = self.frag_loads(g, [(v(OF + (atb * 8 + i) * 4, 4), 1024 * i) for i in range(8)], S_WA, sc1=True)
            for i in range(8):
                to[atb, i] = tk[i]
        self.wgu_issue(12)
        for atb in range(2):
            for i in range(8):
                g.wait(to[atb, i], self.two[0, i], self.two[1, i])
                for afb in range(2):
                    self.mfma(g, V_ACC + 16 * (2 * afb + atb), v(192 + (afb * 8 + i) * 4, 4), v(OF + (atb * 8 + i) * 4, 4), 0 if i == 0 else None)
        if L == 0:
            g.wait(self.tres)
        self.reduce_epilogue(L, LB(L) + o_X1, LB(L) + o_ST1, False)
        self.publish(L, T_X1, S_RB, S_J)
        self.stamp(f'x1pub{L}')

    def phase_gu(self, L):
        g = self.g
        self.wgu_issue(10)
        assert not self.wgu_q
        self.poll(L, T_X1, S_RB, 14)
        self.stamp(f'x1ok{L}')
        ST = 24
        tst = self.stat_loads(g, ST, LB(L) + o_ST1)
        S_DM = S_T + 11
        g('s_lshl_b32', s(S_DM), s(S_W), 2)
        g('s_min_u32', s(S_DM), s(S_DM), 10)
        g('s_lshl_b32', s(S_DM), s(S_DM), 10)
        g('s_mul_i32', s(S_WA), s(S_RB), 4 * 28 * 1024)
        g('s_add_u32', s(S_WA), s(S_WA), s(S_DM))
        g('s_add_u32', s(S_WA), s(S_WA), hex(LB(L) + o_X1))
        g('s_add_u32', s(S_DM), s(S_DM), hex(L_RING))
        tdma = {}

        def dma(h, st):
            t = self.stmp()
            st('s_add_u32', s(t), s(S_WA), hex(h * 14336))
            st('s_add_u32', 'm0', s(S_DM), hex((h % 4) * 14336))
            tdma[h] = [st('buffer_load_dwordx4', v(V_L16), SRD(S_WS), s(t), mods=f'offen offset:{1024 * k} sc1 lds') for k in range(4)]

        for h in range(4):
            dma(h, g)
        g.wait(tst)
        self.stat_sum(g, ST)
        T = 40
        self.ln_finish(g, ST, ST + 1, T)
        C = 48
        k1 = -2.0 * math.sqrt(2.0 / math.pi) * LOG2E
        g('v_mul_f32', v(C), fbits(k1), v(T + 2))
        g('v_mul_f32', v(C + 1), v(T + 2), v(T + 2))
        g('v_mul_f32', v(C + 1), v(C + 1), v(C))
        g('v_mul_f32', v(C + 1), fbits(0.044715), v(C + 1))
        g('v_mul_f32', v(C + 2), v(T + 3), v(T + 3))
        g('v_mov_b32', v(C + 3), 0)
        g('v_mov_b32', v(T + 2), 0)
        g('v_mov_b32', v(T + 3), 0)
        g('s_lshl_b32', s(S_T + 8), s(S_W), 11)
        g('s_add_u32', s(S_T + 8), s(S_T + 8), hex(L_STG))
        g('v_add_u32', v(V_T), s(S_T + 8), v(V_L16))
        g('ds_write_b128', v(V_T), v(T, 4))
        g('ds_write_b128', v(V_T), v(C, 4), mods='offset:1024')
        S_H = S_T + 10
        g('s_mul_i32', s(S_H), s(S_RB), 4 * 112 * 1024)
        g('s_lshl_b32', s(S_T + 8), s(S_J), 2)
        g('s_add_u32', s(S_T + 8), s(S_T + 8), s(S_W))
        g('s_lshl_b32', s(S_T + 8), s(S_T + 8), 11)
        g('s_add_u32', s(S_H), s(S_H), s(S_T + 8))
        g('s_add_u32', s(S_H), s(S_H), hex(LB(L) + o_H))
        S_D1 = S_T + 9
        g('s_cmp_lt_u32', s(S_W), 2)
        g('s_cselect_b32', s(S_D1), 1, -1)
        g('s_mul_i32', s(S_D1), s(S_D1), hex(112 * 1024))
        g('s_add_u32', s(S_D1), s(S_D1), s(S_BWDN))
        self.S_D1 = S_D1
        g.wait(tdma[0], lg0=True)
        g('s_barrier')
        self.stamp(f'gust{L}')

        BR = 48
        KC = [40, 44]
        HP = [24, 32]
        GT = V_T
        steps = [(tb, t) for tb in range(4) for t in range(29)]

        def baddr(tb, t):
            if t == 28:
                return L_STG + tb * 2048
            h = tb * 2 + t // 14
            return L_RING + (h % 4) * 14336 + (t % 14) * 1024

        def gelu(tb):
            st = Stream()
            G0 = V_ACC + 32 * (tb % 2)
            U0 = G0 + 16
            K = KC[tb % 2]
            tk = self.dsr(st, v(K, 4), L_STG + tb * 2048 + 1024)
            st.wait(tk)
            for r0 in range(0, 16, 4):
                rr = range(r0, r0 + 4)
                for r in rr:
                    st('v_mul_f32', v(GT + r % 4), v(G0 + r), v(G0 + r))
                for r in rr:
                    st('v_fma_f32', v(GT + r % 4), v(GT + r % 4), v(K + 1), v(K))
                for r in rr:
                    st('v_mul_f32', v(GT + r % 4), v(GT + r % 4), v(G0 + r))
                for r in rr:
                    st('v_exp_f32', v(GT + r % 4), v(GT + r % 4))
                for r in rr:
                    st('v_mul_f32', v(U0 + r), v(U0 + r), v(G0 + r))
                for r in rr:
                    st('v_fma_f32', v(GT + r % 4), v(GT + r % 4), v(K + 2), v(K + 2))
                for r in rr:
                    st('v_rcp_f32', v(GT + r % 4), v(GT + r % 4))
                for r in rr:
                    st('v_mul_f32', v(U0 + r), v(U0 + r), v(GT + r % 4))
                for q in (r0 // 2, r0 // 2 + 1):
                    st('v_cvt_pk_bf16_f32', v(HP[tb % 2] + q), v(U0 + 2 * q), v(U0 + 2 * q + 1))
            return st

        def hstore(tb):
            t = self.stmp()
            g('s_add_u32', s(t), s(S_H), hex(tb * 112 * 1024))
            self.alt_stores([('buffer_store_dwordx4', v(HP[tb % 2] + 4 * k, 4), v(V_L16), SRD(S_WS), s(t), f'offen offset:{1024 * k}') for k in range(2)])

        self.twdn = {}

        def wdn_load(i, afb):
            tk = self.frag_loads(g, [(self.wdn_reg(i, afb), i * 1024)], S_BWDN if afb == 0 else S_D1)
            self.twdn[i, afb] = tk[0]

        early = [(i, afb) for i in range(19) for afb in range(2)]
        late = [(i, afb) for i in range(19, 28) for afb in range(2)]
        rb_ = {}
        D = 3
        for n in range(D):
            rb_[n] = self.dsr(g, v(BR + 4 * (n % 4), 4), baddr(*steps[n]))
        side = []
        for n, (tb, t) in enumerate(steps):
            G0 = V_ACC + 32 * (tb % 2)
            if t == 2 and tb > 0:
                side = list(gelu(tb - 1).L)
            wt = [rb_[n]]
            if tb == 0:
                wt += [self.twgu[t], self.twgu[29 + t]]
            g.wait(wt)
            B = v(BR + 4 * (n % 4), 4)
            self.mfma(g, G0, a(4 * t, 4), B, 0 if t == 0 else None)

            def take(k):
                c = 0
                while side and c < k:
                    ins = side.pop(0)
                    g.L.append(ins)
                    c += 2 if ins.kind == 'trans' else (0 if ins.kind == 'wait' else 1)
            take(4)
            self.mfma(g, G0 + 16, a(116 + 4 * t, 4), B, 0 if t == 0 else None)
            if t in (10, 24):
                h = tb * 2 + (t // 14)
                if h + 1 < 8:
                    g.wait(tdma[h + 1])
                    g('s_barrier')
                    if h >= 1 and h + 3 < 8:
                        dma(h + 3, g)
            if n + D < len(steps):
                rb_[n + D] = self.dsr(g, v(BR + 4 * ((n + D) % 4), 4), baddr(*steps[n + D]))
            take(3)
            if t == 27 and tb > 0:
                assert not side, len(side)
                hstore(tb - 1)
            if tb < 3 and t % 2 == 1 and t > 2 and early and not (tb == 0 and t < 12):
                wdn_load(*early.pop(0))
            if tb == 3 and late and t >= 1:
                i, afb = late[0]
                if (2 * i + afb - 38) < t:
                    wdn_load(*late.pop(0))
            if tb == 3 and early:
                wdn_load(*early.pop(0))
        assert not early and not late, (early, late)
        self.stamp(f'gumm{L}')
        g.ext(gelu(3))
        hstore(3)
        self.publish(L, T_H, S_RB, S_J)
        self.stamp(f'hpub{L}')

    def phase_dn(self, L):
        g = self.g
        self.poll(L, T_H, S_RB, 14)
        self.stamp(f'hok{L}')
        bases = [S_WA, S_T + 10]
        for atb in range(2):
            self.tb_base(bases[atb], 112 * 1024, LB(L) + o_H, atb)
            g('s_mul_i32', s(S_T + 8), s(S_W), 28 * 1024)
            g('s_add_u32', s(bases[atb]), s(bases[atb]), s(S_T + 8))
        order = [(atb, i) for atb in range(2) for i in range(28)]
        NB = 40
        hreg = lambda n: a(72 + 4 * (n % NB), 4)
        th = {}

        def hload(n):
            atb, i = order[n]
            th[n] = self.frag_loads(g, [(hreg(n), i * 1024)], bases[atb], sc1=True)[0]

        for atb in range(2):
            ns = [n for n in range(NB) if order[n][0] == atb]
            tk = self.frag_loads(g, [(hreg(n), order[n][1] * 1024) for n in ns], bases[atb], sc1=True)
            for n, t in zip(ns, tk):
                th[n] = t
        for n, (atb, i) in enumerate(order):
            g.wait(th[n], self.twdn[i, 0], self.twdn[i, 1])
            for afb in range(2):
                self.mfma(g, V_ACC + 16 * (2 * afb + atb), self.wdn_reg(i, afb), hreg(n), 0 if i == 0 else None)
            if n + NB < len(order):
                hload(n + NB)
        self.stamp(f'dnmm{L}')
        final = (L == 1)
        self.reduce_epilogue(L, LB(L) + o_X2, LB(L) + o_ST2, final)
        if not final:
            self.publish(L, T_X2, S_RB, S_J)
        self.stamp(f'x2pub{L}')

    def build(self):
        g = self.g
        stop = OPT['stop']
        self.prologue()
        done = False
        for L in range(2):
            self.phase_q(L)
            if stop == f'q{L}':
                break
            self.phase_o(L)
            if stop == f'o{L}':
                break
            idle = f'L_idle{L}'
            g.fence()
            g('s_cmp_ge_u32', s(S_J), 14)
            g('s_cbranch_scc1', idle if L == 0 else 'L_fin')
            self.phase_wo(L)
            if stop == f'wo{L}':
                if L == 0:
                    g.label(idle)
                break
            self.phase_gu(L)
            if stop == f'gu{L}':
                if L == 0:
                    g.label(idle)
                break
            self.phase_dn(L)
            if L == 0:
                g.fence()
                g.label(idle)
                if stop == 'dn0':
                    break
                self.poll(0, T_X2, S_RB, 14)
                self.stamp('x2ok')
        g.fence()
        g.label('L_fin')
        if OPT['stamps']:
            g.wait(vm0=True, lg0=True)
            g('s_lshl_b32', s(S_T), 's2', 2)
            g('s_add_u32', s(S_T), s(S_T), s(S_W))
            g('s_lshl_b32', s(S_T), s(S_T), 8)
            g('s_add_u32', s(S_T), s(S_T), hex(TS))
            self.stamp('end')
            g('v_writelane_b32', v(V_TS), s(S_FAST), 62)
            g('v_writelane_b32', v(V_TS), s(S_XCC), 63)
            g('buffer_store_dword', v(V_TS), v(V_L4), SRD(S_WS), s(S_T), mods='offen')
        g.label('L_end')
        g('s_endpgm')
        g.label('L_code_end')
        return finalize(g.L)


HEADER = open('cdna_kernels/' + NAME + '.s.ref').read().split('; Override launch')[0]


def emit(path):
    G = Gen()
    L = G.build()
    out = HEADER
    out += f'; @launch grid=(256,1,1) block=(256,1,1) lds={LDS_BYTES}\n'
    out += '.amdgcn_target "amdgcn-amd-amdhsa--gfx950"\n.text\n'
    out += f'.globl {KNAME}\n.p2align 8\n.type {KNAME},@function\n{KNAME}:\n'
    out += '\n'.join(i.text() for i in L) + '\n'
    out += f'''.section .rodata,"a"
.p2align 6
.amdhsa_kernel {KNAME}
  .amdhsa_next_free_vgpr 512
  .amdhsa_next_free_sgpr 102
  .amdhsa_accum_offset 256
  .amdhsa_group_segment_fixed_size 0
  .amdhsa_kernarg_size 88
  .amdhsa_user_sgpr_count 2
  .amdhsa_user_sgpr_kernarg_segment_ptr 1
  .amdhsa_system_sgpr_workgroup_id_x 1
.end_amdhsa_kernel
'''
    open(path, 'w').write(out)
    return G, L


if __name__ == '__main__':
    import argparse, json
    ap = argparse.ArgumentParser()
    ap.add_argument('-o', default='cdna_kernels/' + NAME + '.s')
    ap.add_argument('--stamps', action='store_true')
    ap.add_argument('--stop', default=None)
    ap.add_argument('--slow', action='store_true')
    A = ap.parse_args()
    OPT.update(stamps=A.stamps, stop=A.stop, force_slow=A.slow)
    G, L = emit(A.o)
    from collections import Counter
    c = Counter(i.kind for i in L)
    print(len(L), dict(c))
    json.dump(dict(stamps=G.stamp_names, WO=WO_, WGU=WGU, WDN=WDN, LB0=LB0, LSZ=LSZ, o_KVP=o_KVP, o_O=o_O, o_X1=o_X1, o_ST1=o_ST1,
                   o_H=o_H, o_X2=o_X2, o_ST2=o_ST2, TS=TS, WS_USED=WS_USED), open(A.o + '.json', 'w'))
```

```python
import re

REG_RE = re.compile(r'(?<![\w.])(-?)(?:abs\()?([vas])(?:\[(\d+):(\d+)\]|(\d+))(?![\w])')


def regs_of(opnd):
    out = set()
    o = opnd.strip()
    if o in ('vcc', 'exec', 'm0', 'scc'):
        return {o}
    if o in ('vcc_lo', 'vcc_hi'):
        return {'vcc'}
    if o in ('exec_lo', 'exec_hi'):
        return {'exec'}
    for m in REG_RE.finditer(o):
        k = m.group(2)
        if m.group(3) is not None:
            for i in range(int(m.group(3)), int(m.group(4)) + 1):
                out.add((k, i))
        else:
            out.add((k, int(m.group(5))))
    return out


TRANS = ('v_exp_f32', 'v_log_f32', 'v_rcp_f32', 'v_rsq_f32', 'v_sqrt_f32', 'v_sin_f32', 'v_cos_f32')


def v(i, n=1):
    return f'v{i}' if n == 1 else f'v[{i}:{i + n - 1}]'


def a(i, n=1):
    return f'a{i}' if n == 1 else f'a[{i}:{i + n - 1}]'


def s(i, n=1):
    return f's{i}' if n == 1 else f's[{i}:{i + n - 1}]'


class Inst:
    __slots__ = ('op', 'opnds', 'mods', 'kind', 'rd', 'wr', 'tok', 'wait', 'cmt', 'nocount', 'size')

    def __init__(self, op, opnds=(), mods='', cmt=''):
        self.op = op
        self.opnds = [str(x) for x in opnds]
        self.mods = mods
        self.cmt = cmt
        self.tok = None
        self.wait = None
        self.nocount = False
        self.classify()

    def classify(self):
        op, o = self.op, self.opnds
        rd, wr = set(), set()
        R = regs_of
        if op.startswith('v_mfma'):
            k = 'mfma'
            wr |= R(o[0])
            for x in o[1:]:
                rd |= R(x)
        elif op.startswith('buffer_load') or op.startswith('global_load'):
            k = 'vmld'
            if 'lds' in self.mods.split() or 'lds' in op:
                for x in o:
                    rd |= R(x)
                rd.add('m0')
                k = 'vmdma'
            else:
                wr |= R(o[0])
                if 'd16' in op:
                    rd |= R(o[0])
                for x in o[1:]:
                    rd |= R(x)
        elif op.startswith('buffer_store') or op.startswith('global_store') or op.startswith('buffer_atomic') or op.startswith('global_atomic'):
            k = 'vmst'
            for x in o:
                rd |= R(x)
        elif op.startswith('ds_read'):
            k = 'dsrd'
            wr |= R(o[0])
            for x in o[1:]:
                rd |= R(x)
        elif op.startswith('ds_'):
            k = 'dswr'
            for x in o:
                rd |= R(x)
        elif op.startswith('s_load') or op in ('s_memtime', 's_memrealtime'):
            k = 'smem'
            wr |= R(o[0])
            for x in o[1:]:
                rd |= R(x)
        elif op in ('s_waitcnt', 's_nop', 's_barrier', 's_sleep', 's_setprio', 's_endpgm'):
            k = op[2:]
        elif op.startswith('s_cbranch') or op == 's_branch':
            k = 'branch'
            if 'vcc' in op:
                rd.add('vcc')
            if 'scc' in op:
                rd.add('scc')
            if 'exec' in op:
                rd.add('exec')
        elif op.startswith('s_cmp') or op.startswith('s_bitcmp'):
            k = 'salu'
            for x in o:
                rd |= R(x)
            wr.add('scc')
        elif op.startswith('s_'):
            k = 'salu'
            wr |= R(o[0])
            for x in o[1:]:
                rd |= R(x)
            if 'saveexec' in op:
                wr.add('exec')
                rd.add('exec')
            if op.startswith(('s_cselect', 's_addc', 's_subb')):
                rd.add('scc')
            if not op.startswith(('s_mov', 's_cselect', 's_mul_i32', 's_getpc', 's_getreg')):
                wr.add('scc')
        elif op.startswith('v_cmp'):
            k = 'valu'
            wr |= R(o[0])
            for x in o[1:]:
                rd |= R(x)
        elif op.startswith('v_permlane') and 'swap' in op:
            k = 'perm'
            wr |= R(o[0]) | R(o[1])
            rd |= R(o[0]) | R(o[1])
        elif op.startswith('v_readfirstlane') or op.startswith('v_readlane'):
            k = 'rdlane'
            wr |= R(o[0])
            for x in o[1:]:
                rd |= R(x)
        elif op.startswith('v_'):
            k = 'valu'
            if op.startswith(TRANS):
                k = 'trans'
            if op.startswith('v_dot2'):
                k = 'dot'
            wr |= R(o[0])
            for x in o[1:]:
                rd |= R(x)
            if op.startswith('v_fmac') or op.startswith('v_dot2c'):
                rd |= R(o[0])
            if op.startswith(('v_add_co', 'v_addc_co', 'v_sub_co')):
                wr |= R(o[1])
        elif op == 'LABEL':
            k = 'label'
        elif op == 'RAW':
            k = 'raw'
        elif op == 'WAIT':
            k = 'wait'
        elif op == 'USE':
            k = 'use'
            for x in o:
                rd |= R(x)
        elif op == 'FENCE':
            k = 'fence'
        else:
            raise ValueError('unknown op ' + op)
        self.kind, self.rd, self.wr = k, rd, wr

    def text(self):
        if self.kind == 'label':
            return f'{self.opnds[0]}:'
        if self.kind == 'raw':
            return self.opnds[0]
        t = '  ' + self.op
        if self.opnds:
            t += ' ' + ', '.join(self.opnds)
        if self.mods:
            t += ' ' + self.mods
        if self.cmt:
            t += '  ; ' + self.cmt
        return t


VALU_KINDS = ('valu', 'trans', 'dot', 'perm', 'rdlane')
VM_KINDS = ('vmld', 'vmdma', 'vmst')
DS_KINDS = ('dsrd', 'dswr')


class Tok:
    pass


class Stream:
    def __init__(self):
        self.L = []

    def __call__(self, op, *opnds, mods='', cmt=''):
        i = Inst(op, opnds, mods, cmt)
        i.tok = Tok()
        self.L.append(i)
        return i.tok

    def label(self, name):
        self.L.append(Inst('LABEL', [name]))

    def raw(self, text):
        self.L.append(Inst('RAW', [text]))

    def wait(self, *toks, vm0=False, lg0=False):
        i = Inst('WAIT')
        flat = []
        for t in toks:
            if t is None:
                continue
            if isinstance(t, (list, tuple)):
                flat += [x for x in t if x is not None]
            else:
                flat.append(t)
        i.wait = (flat, vm0, lg0)
        self.L.append(i)

    def use(self, *opnds):
        self.L.append(Inst('USE', opnds))

    def fence(self):
        self.L.append(Inst('FENCE'))

    def ext(self, other):
        self.L += other.L if isinstance(other, Stream) else other

    def nocount(self, n):
        for i in self.L[-n:]:
            i.nocount = True


def interleave(main, side, per_gap, start=0, cost=None, budget=None):
    out = []
    side = list(side)
    p = 0
    for g, grp in enumerate(main):
        out += grp
        if g >= start:
            n = per_gap(g) if callable(per_gap) else per_gap
            c = 0
            while p < len(side) and c < n:
                ins = side[p]
                w = 2 if ins.kind == 'trans' else (0 if ins.kind in ('wait', 'use') else 1)
                if c + w > n and c > 0:
                    break
                out.append(ins)
                c += w
                p += 1
    return out, side[p:]


def resolve_waits(L):
    out = []
    vm = []
    lg = []
    smem_pending = False
    seen = set()
    for i in L:
        if i.tok is not None:
            seen.add(i.tok)
        if i.kind in VM_KINDS:
            if not i.nocount:
                vm.append(i.tok)
            out.append(i)
        elif i.kind in DS_KINDS:
            if not i.nocount:
                lg.append(i.tok)
            out.append(i)
        elif i.kind == 'smem':
            smem_pending = True
            lg.append(i.tok)
            out.append(i)
        elif i.kind == 'wait':
            toks, vm0, lg0 = i.wait
            nv = nl = None
            if vm0:
                nv = 0
            if lg0:
                nl = 0
            for t in toks:
                assert t in seen, 'wait on an operation that has not been issued yet'
                if t in vm:
                    n = len(vm) - 1 - vm.index(t)
                    nv = n if nv is None else min(nv, n)
                elif t in lg:
                    n = len(lg) - 1 - lg.index(t)
                    if smem_pending:
                        n = 0
                    nl = n if nl is None else min(nl, n)
            parts = []
            if nv is not None and (vm0 or vm):
                nv = min(nv, 63)
                parts.append(f'vmcnt({nv})')
                vm = vm[len(vm) - nv:] if nv else []
            if nl is not None and (lg0 or lg):
                nl = min(nl, 15)
                parts.append(f'lgkmcnt({nl})')
                lg = lg[len(lg) - nl:] if nl else []
                if nl == 0:
                    smem_pending = False
            if parts:
                out.append(Inst('s_waitcnt', [' '.join(parts)]))
        else:
            if i.kind == 'waitcnt':
                t = i.opnds[0]
                m = re.search(r'vmcnt\((\d+)\)', t)
                if m:
                    n = int(m.group(1))
                    vm = vm[len(vm) - n:] if n else []
                m = re.search(r'lgkmcnt\((\d+)\)', t)
                if m:
                    n = int(m.group(1))
                    lg = lg[len(lg) - n:] if n else []
                    if n == 0:
                        smem_pending = False
            out.append(i)
    return out


def _states(i):
    if i.kind == 'nop':
        return int(i.opnds[0]) + 1
    if i.kind in ('label', 'raw', 'use', 'fence'):
        return 0
    return 1


def _isvec(r):
    return isinstance(r, tuple) and r[0] in 'va'


def _issgpr(r):
    return (isinstance(r, tuple) and r[0] == 's') or r == 'vcc'


def need_states(p, c):
    n = 0
    pk, ck = p.kind, c.kind
    pw = p.wr
    if ck == 'fence':
        if pk == 'mfma':
            return 12
        if pk in VALU_KINDS:
            return 5 if any(_issgpr(r) for r in pw) else 3
        if pk == 'vmst':
            return 2
        if pk == 'salu' and 'm0' in pw:
            return 1
        return 0
    if pk == 'mfma':
        if ck == 'mfma':
            ab = regs_of(c.opnds[1]) | regs_of(c.opnds[2])
            cc = regs_of(c.opnds[3])
            if pw & ab:
                n = max(n, 12)
            if pw & cc:
                n = max(n, 0 if cc == pw else 10)
            elif pw & c.wr:
                n = max(n, 10)
        elif ck in VALU_KINDS or ck in VM_KINDS or ck in DS_KINDS or ck == 'use':
            if pw & (c.rd | c.wr):
                n = max(n, 12)
            if ck in VALU_KINDS and (regs_of(p.opnds[3]) & c.wr):
                n = max(n, 7)
    if pk in VALU_KINDS:
        vw = {r for r in pw if _isvec(r)}
        sw = {r for r in pw if _issgpr(r)}
        if ck == 'mfma' and vw & c.rd:
            n = max(n, 2)
        if ck == 'perm' and vw & c.rd:
            n = max(n, 2)
        if ck == 'rdlane' and vw & c.rd:
            n = max(n, 1)
        if pk == 'trans' and ck in VALU_KINDS and ck != 'trans' and vw & c.rd:
            n = max(n, 1)
        if pk == 'trans' and ck in ('trans',) and vw & c.rd:
            n = max(n, 1)
        if pk == 'dot':
            if ck == 'dot' and c.op == p.op:
                if vw & (regs_of(c.opnds[1]) | regs_of(c.opnds[2])):
                    n = max(n, 3)
            elif (ck in VALU_KINDS or ck in VM_KINDS or ck in DS_KINDS or ck in ('mfma', 'use')) and vw & (c.rd | c.wr):
                n = max(n, 3)
        if sw:
            if (ck in VM_KINDS) and sw & c.rd:
                n = max(n, 5)
            if ck in VALU_KINDS and sw & c.rd:
                n = max(n, 4 if ck == 'rdlane' else 2)
            if ck in ('salu', 'branch', 'smem') and sw & c.rd:
                n = max(n, 2)
    if pk == 'salu':
        if 'm0' in pw and ck in ('vmdma',):
            n = max(n, 1)
        if 'exec' in pw and ck in ('perm', 'rdlane', 'mfma'):
            n = max(n, 1)
    if pk == 'vmst' and ('x4' in p.op or 'x3' in p.op):
        data = regs_of(p.opnds[0]) if p.op.startswith('buffer') else regs_of(p.opnds[1])
        if data & c.wr:
            n = max(n, 2)
    return n


def pad_hazards(L):
    out = []
    for c in L:
        if c.kind not in ('label', 'raw', 'wait'):
            need = 0
            dist = 0
            for p in reversed(out):
                if dist >= 20:
                    break
                if p.kind not in ('label', 'raw', 'use', 'fence'):
                    r = need_states(p, c) - dist
                    if r > need:
                        need = r
                dist += _states(p)
            while need > 0:
                k = min(need, 16)
                out.append(Inst('s_nop', [str(k - 1)]))
                need -= k
        out.append(c)
    return out


def finalize(L):
    L = resolve_waits(L)
    L = pad_hazards(L)
    return [i for i in L if i.kind not in ('use', 'fence')]


def cost(i):
    k = i.kind
    if k == 'mfma':
        return 32
    if k == 'trans':
        return 8
    if k in ('label', 'raw', 'use', 'fence', 'wait'):
        return 0
    if k == 'nop':
        return 4 * (int(i.opnds[0]) + 1)
    return 4


def sprinkle(L, bg, spacing, start=0, stop=None, mfma_shadow=True):
    out = []
    bg = list(bg)
    t = 0
    nxt = start
    since_mfma = 99
    depth = 0
    live = [False] * (len(L) + 1)
    cur = False
    for n in range(len(L) - 1, -1, -1):
        live[n] = cur
        if 'scc' in L[n].wr:
            cur = False
        if 'scc' in L[n].rd:
            cur = True
    for n, i in enumerate(L):
        out.append(i)
        if i.kind == 'mfma':
            t += 32
            since_mfma = 0
        else:
            c = cost(i)
            if c and since_mfma < 6 and mfma_shadow and i.kind not in ('dot',) and not i.op.startswith('v_pk'):
                since_mfma += c // 4
            else:
                t += c
        if i.kind == 'branch':
            depth += 1
        if i.kind == 'label':
            depth = max(0, depth - 1)
        scc_live = live[n]
        if bg and t >= nxt and depth == 0 and not scc_live and (stop is None or t < stop) and i.kind not in ('use',):
            out += bg.pop(0)
            nxt = t + spacing
    return out, bg
```

```python
import sys, math, struct
from dsl import *

NAME = 'interleave_layers__linear_kernel_hedgehog__glu_gated_geglu__prompt'
KNAME = NAME + '_kernel'

OPT = dict(stamps=False, force_slow=False, touch=True)

EPOCH = 0
F_BASE = 4096
F2_BASE = 0x6000
CSW = 0x1A000
WQW = 0x30000
WO_ = WQW + 16 * 87 * 1024
WGU = WO_ + 14 * 32 * 1024
WDN = WGU + 56 * 2 * 29 * 1024
LB0 = WDN + 14 * 112 * 1024
o_KVP = 0
o_O = o_KVP + 16 * 16 * 4096
o_X1 = o_O + 64 * 32 * 1024
o_ST1 = o_X1 + 64 * 28 * 1024
o_H = o_ST1 + 64 * 14 * 256
o_X2 = o_H + 64 * 112 * 1024
o_ST2 = o_X2 + 64 * 28 * 1024
LSZ = o_ST2 + 64 * 14 * 256
TS = LB0 + 2 * LSZ
WS_USED = TS + 256 * 4 * 256
OOB = 0x7F000000
T_O, T_X1, T_H, T_X2, T_KV, T_WQ, T_XID, T_SH = range(8)
assert F_BASE + 8 * 16 * 128 <= F2_BASE and F2_BASE + 5 * 16 * 1024 <= CSW and CSW + 16 * 3 * 14 * 128 <= WQW


def LB(L):
    return LB0 + L * LSZ


L_WK, L_WV, L_WQ = 0, 29 * 1024, 58 * 1024
L_IC = 87 * 1024
L_STG = L_IC + 2048
L_SCR = L_STG + 8192
L_KVS = L_SCR
L_KVF = L_SCR + 32768
L_CSP = L_SCR + 49152
L_RED = L_SCR
L_RING = L_SCR
LDS_BYTES = 163840
L_XS = LDS_BYTES - 4 * 28672
assert L_SCR + 4 * 14336 <= LDS_BYTES

S_X, S_WQKV, S_PHI, S_WS, S_OUT, S_SH = 8, 12, 16, 20, 24, 28
S_PWO, S_PWG, S_PWU, S_PWD = 32, 34, 36, 38
S_RB, S_J, S_W, S_TAG, S_FAST, S_XCC, S_TP, S_FP = 40, 41, 42, 43, 44, 45, 46, 47
S_T = 48
S_K10, S_K01, S_K11 = 60, 61, 62
S_CNT = 63
S_LO = 64
S_BWO, S_BWGU, S_BWDN = 66, 67, 68
S_WA = 69
POOLS = {'A': (48, 8), 'B': (70, 4), 'C': (74, 4), 'E': (84, 4)}
S_BWO1, S_BWDN1 = 82, 83
S_SRC, S_DST, S_XDST = 84, 88, 92
S_WB = 93
S_M = 94
S_PC = 96
SRD = lambda b: s(b, 4)

V_LANE, V_L16, V_L16B, V_L16C = 0, 1, 2, 3
V_ST, V_SL, V_XR, V_L4 = 4, 5, 6, 7
V_T = 8
V_TS = 15
V_RES = 16
V_PHQ = 24
V_U = 40
V_ACC = 64
V_BIG = 128
EXT = V_BIG + 112
VR, VSC = 246, 248
A_DUMMY = 255

LOG2E = 1.4426950408889634


def fbits(x):
    return '0x%08x' % struct.unpack('<I', struct.pack('<f', x))[0]


class Gen:
    def __init__(self):
        self.g = Stream()
        self.nlabel = 0
        self.rr = {k: 0 for k in POOLS}
        self.nstamp = 0
        self.stamp_names = []

    def lab(self, base):
        self.nlabel += 1
        return f'L_{base}_{self.nlabel}'

    def stmp(self, pool='A'):
        b, n = POOLS[pool]
        r = b + self.rr[pool]
        self.rr[pool] = (self.rr[pool] + 1) % n
        return r

    def lds(self, addr):
        return v(V_L16 + addr // 65536), addr % 65536

    def dsr(self, g, dst, addr):
        b, off = self.lds(addr)
        return g('ds_read_b128', dst, b, mods=f'offset:{off}')

    def dsw(self, g, addr, src):
        b, off = self.lds(addr)
        return g('ds_write_b128', b, src, mods=f'offset:{off}')

    def fgroups(self, items, sc1=False, pool='A'):
        groups, toks = [], []
        cur = None
        sr = None
        for dst, base, off in items:
            st = Stream()
            fl = (base, off & ~4095)
            if fl != cur:
                if fl[1] == 0:
                    sr = base
                else:
                    sr = self.stmp(pool)
                    st('s_add_u32', s(sr), s(base), hex(fl[1]))
                cur = fl
            toks.append(st('buffer_load_dwordx4', dst, v(V_L16), SRD(S_WS), s(sr),
                           mods=f'offen offset:{off & 4095}' + (' sc1' if sc1 else '')))
            groups.append(st.L)
        return groups, toks

    def put(self, g, groups):
        for grp in groups:
            g.L += grp

    def stamp(self, name):
        if not OPT['stamps']:
            return
        g = self.g
        g.wait(lg0=True)
        g('s_memtime', s(98, 2))
        g.wait(lg0=True)
        g('v_writelane_b32', v(V_TS), s(98), self.nstamp)
        self.stamp_names.append(name)
        self.nstamp += 1
        assert self.nstamp <= 60

    def alt_stores(self, g, stores, always_sc1=False):
        if always_sc1 or OPT['force_slow']:
            return [g(op, d, vo, srd, so, mods=m + ' sc1') for op, d, vo, srd, so, m in stores]
        l1, l2 = self.lab('slow'), self.lab('join')
        for op, d, vo, srd, so, m in stores:
            g.use(d, vo)
        g('s_cmp_eq_u32', s(S_FAST), 0)
        g('s_cbranch_scc1', l1)
        for op, d, vo, srd, so, m in stores:
            g(op, d, vo, srd, so, mods=m)
        g.nocount(len(stores))
        g('s_branch', l2)
        g.label(l1)
        tk = [g(op, d, vo, srd, so, mods=m + ' sc1') for op, d, vo, srd, so, m in stores]
        g.label(l2)
        return tk

    def flag_off(self, L, typ):
        if typ < T_KV:
            return F_BASE + (L * 4 + typ) * 16 * 128
        return F2_BASE + {T_KV: L, T_WQ: 2, T_XID: 3, T_SH: 4}[typ] * 16 * 1024

    def flag_store(self, L, typ, grp_s, idx_s, always_sc1=False, xid=False):
        g = self.g
        wide = typ >= T_KV
        skip = self.lab('pubskip')
        g('s_cmp_lg_u32', s(S_W), 0)
        g('s_cbranch_scc1', skip)
        t = S_T + 8
        g('s_lshl_b32', s(t), s(grp_s), 10 if wide else 7)
        g('s_lshl_b32', s(t + 1), s(idx_s), 6 if wide else 2)
        g('s_add_u32', s(t), s(t), s(t + 1))
        g('s_add_u32', s(t), s(t), hex(self.flag_off(L, typ)))
        g('v_mov_b32', v(V_T), s(S_TAG))
        g('s_mov_b64', 'exec', 1)
        n0 = len(g.L)
        self.alt_stores(g, [('buffer_store_dword', v(V_T), v(V_L4), SRD(S_WS), s(t), 'offen')], always_sc1 or wide)
        if xid:
            g('s_lshl_b32', s(t), s(S_RB), 10)
            g('s_lshl_b32', s(t + 1), s(S_J), 6)
            g('s_add_u32', s(t), s(t), s(t + 1))
            g('s_add_u32', s(t), s(t), hex(self.flag_off(0, T_XID)))
            g('v_add_u32', v(V_T + 1), s(S_XCC), v(V_T))
            g('buffer_store_dword', v(V_T + 1), v(V_L4), SRD(S_WS), s(t), mods='offen sc1')
        for i in g.L[n0:]:
            i.nocount = True
        g('s_mov_b64', 'exec', -1)
        g.fence()
        g.label(skip)

    def publish(self, L, typ, grp_s, idx_s, toks, post=(), xid=False):
        g = self.g
        self.put(g, post)
        g.wait(toks, lg0=True)
        g('s_barrier')
        self.flag_store(L, typ, grp_s, idx_s, xid=xid)

    def poll(self, L, typ, grp_s, count):
        g = self.g
        skip, loop, done = self.lab('pollskip'), self.lab('poll'), self.lab('polldone')
        g.fence()
        g('s_cmp_lg_u32', s(S_W), 0)
        g('s_cbranch_scc1', skip)
        t = S_T + 8
        wide = typ >= T_KV
        g('s_lshl_b32', s(t), s(grp_s), 10 if wide else 7)
        g('s_add_u32', s(t), s(t), hex(self.flag_off(L, typ)))
        g('s_mov_b32', s(S_CNT), 0)
        if wide:
            g('v_lshlrev_b32', v(V_T + 1), 6, v(V_LANE))
        g('s_mov_b64', 'exec', hex((1 << count) - 1))
        g.label(loop)
        g('buffer_load_dword', v(V_T), v(V_T + 1 if wide else V_L4), SRD(S_WS), s(t), mods='offen sc1')
        g.nocount(1)
        g.raw('  s_waitcnt vmcnt(0)')
        g('v_cmp_ne_u32', 'vcc', s(S_TAG), v(V_T))
        g('s_add_u32', s(S_CNT), s(S_CNT), 1)
        g('s_nop', 1)
        g('s_cbranch_vccz', done)
        g('s_cmp_lt_u32', s(S_CNT), 0x40000)
        g('s_cbranch_scc1', loop)
        g.label(done)
        g('s_mov_b64', 'exec', -1)
        g.label(skip)
        g('s_barrier')

    def onehot(self, g, dst, cbase, chained, tmp):
        g('v_and_b32', v(tmp), 1, v(cbase))
        g('v_lshlrev_b32', v(tmp), 4, v(tmp))
        g('v_lshlrev_b32', v(tmp), v(tmp), v(tmp + 2))
        g('v_lshrrev_b32', v(tmp + 1), 1, v(cbase))
        for t in range(2):
            for q in range(4):
                K = 16 * t + (8 * (q // 2) + 2 * (q % 2) if chained else 2 * q)
                g('v_cmp_eq_u32', s(S_T + 2 * q, 2), K // 2, v(tmp + 1))
            for q in range(4):
                g('v_cndmask_b32', v(dst + 4 * t + q), 0, v(tmp), s(S_T + 2 * q, 2))

    def mfma(self, g, d, A, B, c=None):
        return g('v_mfma_f32_32x32x16_bf16', v(d, 16), A, B, v(d, 16) if c is None else c)

    def ln_finish(self, g, S1, S2, T):
        g('v_permlane32_swap_b32', v(S1), v(S2))
        g('v_add_f32', v(S1), v(S1), v(S2))
        g('v_mov_b32', v(S2), v(S1))
        g('v_permlane32_swap_b32', v(S1), v(S2))
        g('v_mul_f32', v(S1), fbits(1.0 / 448), v(S1))
        g('v_mul_f32', v(S2), fbits(1.0 / 448), v(S2))
        g('v_fma_f32', v(S2), f'-{v(S1)}', v(S1), v(S2))
        g('v_max_f32', v(S2), 0, v(S2))
        g('v_cvt_pk_bf16_f32', v(T), f'-{v(S1)}', f'-{v(S1)}')
        g('v_cvt_pk_bf16_f32', v(T + 4), v(S2), v(S2))
        g('v_and_b32', v(T + 4), '0xffff0000', v(T + 4))
        g('v_add_f32', v(T + 4), fbits(1e-5), v(T + 4))
        g('v_cvt_pk_bf16_f32', v(T + 4), v(T + 4), v(T + 4))
        g('v_and_b32', v(T + 4), '0xffff0000', v(T + 4))
        g('v_sqrt_f32', v(T + 4), v(T + 4))
        g('v_cvt_pk_bf16_f32', v(T + 4), v(T + 4), v(T + 4))
        g('v_and_b32', v(T + 3), '0xffff0000', v(T + 4))
        g('v_lshrrev_b32', v(T + 1), 16, v(T + 4))
        g('v_rcp_f32', v(T + 2), v(T + 3))
        g('v_cndmask_b32', v(T), 0, v(T), s(S_LO, 2))
        g('v_cndmask_b32', v(T + 1), 0, v(T + 1), s(S_LO, 2))

    def q_stats_finish(self, g, S1, S2):
        self.ln_finish(g, S1, S2, EXT)
        g('v_mov_b32', v(VR), v(EXT + 2))
        g('v_mul_f32', v(VSC), fbits(LOG2E), v(EXT + 2))
        g('v_mov_b32', v(EXT + 2), 0)
        g('v_mov_b32', v(EXT + 3), 0)

    def stat_loads(self, g, dst, st_off):
        t = self.stmp()
        g('s_lshl_b32', s(t), s(S_RB), 2)
        g('s_add_u32', s(t), s(t), s(S_W))
        g('s_mul_i32', s(t), s(t), 14 * 256)
        g('s_add_u32', s(t), s(t), hex(st_off))
        return [g('buffer_load_dwordx2', v(dst + 2 * i, 2), v(V_SL), SRD(S_WS), s(t), mods=f'offen offset:{512 * i} sc1')
                for i in range(7)]

    def stat_sum(self, g, dst):
        g('v_pk_add_f32', v(dst, 2), v(dst, 2), v(dst + 2, 2))
        g('v_pk_add_f32', v(dst + 4, 2), v(dst + 4, 2), v(dst + 6, 2))
        g('v_pk_add_f32', v(dst + 8, 2), v(dst + 8, 2), v(dst + 10, 2))
        g('v_pk_add_f32', v(dst, 2), v(dst, 2), v(dst + 12, 2))
        g('v_pk_add_f32', v(dst + 4, 2), v(dst + 4, 2), v(dst + 8, 2))
        g('v_pk_add_f32', v(dst, 2), v(dst, 2), v(dst + 4, 2))

    def phi(self, g, A, E, T, F, SC, extra=None):
        g('v_max3_f32', v(T), v(A), v(A + 1), v(A + 2))
        g('v_max3_f32', v(T + 1), f'-{v(A)}', f'-{v(A + 1)}', f'-{v(A + 2)}')
        for r in range(3, 13, 2):
            g('v_max3_f32', v(T), v(T), v(A + r), v(A + r + 1))
            g('v_max3_f32', v(T + 1), v(T + 1), f'-{v(A + r)}', f'-{v(A + r + 1)}')
        g('v_max_f32', v(T), v(T), v(A + 13))
        g('v_max_f32', v(T + 1), v(T + 1), f'-{v(A + 13)}')
        g('v_permlane32_swap_b32', v(T), v(T + 1))
        g('v_max_f32', v(T), v(T), v(T + 1))
        g('v_mul_f32', v(T), v(T), v(SC))
        g('v_mov_b32', v(T + 1), v(T))
        g('v_permlane32_swap_b32', v(T), v(T + 1))
        for r in range(0, 14, 2):
            g('v_pk_fma_f32', v(E + r, 2), v(A + r, 2), v(SC, 2), v(T, 2),
              mods='op_sel:[0,0,0] op_sel_hi:[1,0,0] neg_lo:[0,0,1] neg_hi:[0,0,1]')
        for r in range(0, 14, 2):
            g('v_pk_fma_f32', v(A + r, 2), v(A + r, 2), v(SC, 2), v(T, 2),
              mods='op_sel:[0,0,1] op_sel_hi:[1,0,1] neg_lo:[1,0,1] neg_hi:[1,0,1]')
        for r in range(14):
            g('v_exp_f32', v(E + r), v(E + r))
        for r in range(14):
            g('v_exp_f32', v(A + r), v(A + r))
        g('v_pk_add_f32', v(E + 14, 2), v(E, 2), v(E + 2, 2))
        g('v_pk_add_f32', v(A + 14, 2), v(A, 2), v(A + 2, 2))
        for r in range(4, 14, 2):
            g('v_pk_add_f32', v(E + 14, 2), v(E + 14, 2), v(E + r, 2))
            g('v_pk_add_f32', v(A + 14, 2), v(A + 14, 2), v(A + r, 2))
        g('v_add_f32', v(T), v(E + 14), v(E + 15))
        g('v_add_f32', v(T + 1), v(A + 14), v(A + 15))
        g('v_permlane32_swap_b32', v(T), v(T + 1))
        g('v_add_f32', v(T), v(T), v(T + 1))
        g('v_rcp_f32', v(T), v(T))
        if extra is not None:
            g('v_mul_f32', v(T), v(T), v(extra))
        g('v_mov_b32', v(T + 1), v(T))
        g('v_permlane32_swap_b32', v(T), v(T + 1))
        for r in range(0, 14, 2):
            g('v_pk_mul_f32', v(E + r, 2), v(E + r, 2), v(T, 2), mods='op_sel:[0,0] op_sel_hi:[1,0]')
        for r in range(0, 14, 2):
            g('v_pk_mul_f32', v(A + r, 2), v(A + r, 2), v(T, 2), mods='op_sel:[0,1] op_sel_hi:[1,1]')
        for q in range(7):
            g('v_cvt_pk_bf16_f32', v(F + q), v(E + 2 * q), v(E + 2 * q + 1))
        g('v_mov_b32', v(F + 7), 0)
        for q in range(7):
            g('v_cvt_pk_bf16_f32', v(F + 8 + q), v(A + 2 * q), v(A + 2 * q + 1))
        g('v_mov_b32', v(F + 15), 0)

    def pack(self, g, dst, src, n=8):
        for q in range(n):
            g('v_cvt_pk_bf16_f32', v(dst + q), v(src + 2 * q), v(src + 2 * q + 1))

    def cs_to_frag(self, g, R, sel):
        g('v_cvt_pk_bf16_f32', v(R + 1), v(R), v(R))
        g('v_and_b32', v(R + 1), '0xffff0000', v(R + 1))
        g('v_sub_f32', v(R + 1), v(R), v(R + 1))
        g('v_cvt_pk_bf16_f32', v(R), v(R), v(R + 1))
        g('v_cndmask_b32', v(R), 0, v(R), s(S_LO, 2))
        g('v_mov_b32', v(R + 1), 0 if sel is None else v(sel))
        g('v_mov_b32', v(R + 2), 0)
        g('v_mov_b32', v(R + 3), 0)

    def wq_reset(self):
        it = []
        for i in range(8):
            for afb in range(2):
                it.append((('o', afb, i), v(192 + (afb * 8 + i) * 4, 4), S_BWO1 if afb else S_BWO, i * 1024))
        self.wo_q = sorted(it, key=lambda x: (x[0][2] // 4, x[0][1], x[0][2]))
        it = []
        for t0 in range(0, 29, 4):
            for p in range(2):
                for t in range(t0, min(t0 + 4, 29)):
                    it.append((('g', p, t), a(116 * p + 4 * t, 4), S_BWGU, (29 * p + t) * 1024))
        self.wgu_q = it
        self.tw = {}

    def wtake(self, q, n):
        lst = getattr(self, q)
        it = lst[:n]
        setattr(self, q, lst[n:])
        groups, toks = self.fgroups([(d, b, o) for _, d, b, o in it], pool='B')
        for (k, *_), t in zip(it, toks):
            self.tw[k] = t
        return groups

    def wdn_reg(self, i, afb):
        n = 2 * i + afb
        if n < 32:
            return v(128 + 4 * n, 4)
        if n < 38:
            return a(232 + 4 * (n - 32), 4)
        return a(4 * (n - 38), 4)

    def emit(self, st, bg=(), spacing=64, start=0, stop=None):
        L, rest = sprinkle(st.L, bg, spacing, start, stop)
        self.g.L += L
        self.put(self.g, rest)

    def prologue(self):
        g = self.g
        g('s_cmp_ge_u32', 's2', 256)
        g('s_cbranch_scc1', 'L_end')
        g('s_load_dwordx2', s(S_PHI, 2), 's[0:1]', 16)
        g('s_load_dwordx2', s(S_WQKV, 2), 's[0:1]', 8)
        g('s_load_dwordx2', s(S_X, 2), 's[0:1]', 0)
        g('s_load_dwordx2', s(S_WS, 2), 's[0:1]', 80)
        g('s_load_dwordx2', s(S_OUT, 2), 's[0:1]', 64)
        g('s_load_dwordx2', s(S_PWO, 2), 's[0:1]', 24)
        g('s_load_dwordx2', s(S_PWG, 2), 's[0:1]', 40)
        g('s_load_dwordx2', s(S_PWU, 2), 's[0:1]', 48)
        g('s_load_dwordx2', s(S_PWD, 2), 's[0:1]', 56)
        g('s_getpc_b64', s(S_PC, 2))
        g.label('L_pc')
        g('v_lshrrev_b32', v(V_T), 6, 'v0')
        g('v_and_b32', v(V_LANE), 63, 'v0')
        g('v_readfirstlane_b32', s(S_W), v(V_T))
        g('s_getreg_b32', s(S_XCC), 'hwreg(HW_REG_XCC_ID, 0, 4)')
        g('s_and_b32', s(S_RB), 's2', 7)
        g('s_lshl_b32', s(S_RB), s(S_RB), 1)
        g('s_lshr_b32', s(S_T), 's2', 7)
        g('s_add_u32', s(S_RB), s(S_RB), s(S_T))
        g('s_lshr_b32', s(S_J), 's2', 3)
        g('s_and_b32', s(S_J), s(S_J), 15)
        M, HI, PI = V_T + 1, V_T + 2, V_T + 3
        g('v_lshlrev_b32', v(V_L16), 4, v(V_LANE))
        g('v_and_b32', v(M), 31, v(V_LANE))
        g('v_lshrrev_b32', v(HI), 5, v(V_LANE))
        g('v_and_b32', v(PI), 0x13, v(M))
        g('v_and_b32', v(V_T + 4), 4, v(M))
        g('v_lshl_or_b32', v(PI), v(V_T + 4), 1, v(PI))
        g('v_and_b32', v(V_T + 4), 8, v(M))
        g('v_lshrrev_b32', v(V_T + 4), 1, v(V_T + 4))
        g('v_or_b32', v(PI), v(PI), v(V_T + 4))
        VWQ, VPH, H16, DINV = V_U, V_U + 1, V_U + 2, V_U + 3
        g('v_lshlrev_b32', v(H16), 4, v(HI))
        g('v_mul_u32_u24', v(VWQ), 2688, v(PI))
        g('v_add_u32', v(VWQ), v(VWQ), v(H16))
        g('v_mul_u32_u24', v(VPH), 56, v(PI))
        g('v_add_u32', v(VPH), v(VPH), v(H16))
        g('v_cmp_gt_u32', 'vcc', 28, v(PI))
        g('v_mov_b32', v(V_T + 4), hex(OOB))
        g('v_cndmask_b32', v(VPH), v(V_T + 4), v(VPH), 'vcc')
        XA = 244
        g('v_lshrrev_b32', v(V_T + 4), 3, v(V_LANE))
        g('v_lshrrev_b32', v(V_T + 5), 4, v(V_LANE))
        g('v_xor_b32', v(V_T + 5), v(V_T + 5), v(V_LANE))
        g('v_and_b32', v(V_T + 5), 7, v(V_T + 5))
        g('v_lshlrev_b32', v(V_T + 5), 4, v(V_T + 5))
        g('v_mul_u32_u24', v(XA), 896, v(V_T + 4))
        g('v_add_u32', v(XA), v(XA), v(V_T + 5))
        g('v_xor_b32', v(XA + 1), 64, v(XA))
        g('s_and_b32', s(S_T + 8), 's2', 7)
        g('s_mul_i32', s(S_T + 8), s(S_T + 8), 28)
        g('s_lshr_b32', s(S_T + 9), 's2', 3)
        g('s_add_u32', s(S_T + 8), s(S_T + 8), s(S_T + 9))
        g('s_cmp_ge_u32', 's2', 224)
        g('s_cselect_b32', s(S_T + 8), 's2', s(S_T + 8))
        g('s_lshr_b32', s(S_T + 9), s(S_T + 8), 4)
        g('s_and_b32', s(S_T + 8), s(S_T + 8), 15)
        g('s_min_u32', s(S_T + 10), s(S_W), 2)
        g('s_add_u32', s(S_T + 11), s(S_T + 10), 1)
        g('s_cmp_eq_u32', s(S_T + 11), 3)
        g('s_cselect_b32', s(S_T + 11), 0, s(S_T + 11))
        g('s_mul_i32', s(S_T), s(S_T + 8), 1568)
        g('s_mul_i32', s(S_T + 1), s(S_T + 8), 56)
        g('s_mul_i32', s(S_T + 2), s(S_T + 9), 32 * 2688)
        g('s_add_u32', s(S_T + 1), s(S_T + 1), s(S_T + 2))
        g('s_mul_i32', s(S_T + 2), s(S_T + 11), 896)
        g('s_add_u32', s(S_T + 1), s(S_T + 1), s(S_T + 2))
        g('s_lshl_b32', s(S_WA), s(S_RB), 2)
        g('s_add_u32', s(S_WA), s(S_WA), s(S_W))
        g('s_mul_i32', s(S_WA), s(S_WA), 32 * 896)
        g('s_mul_i32', s(S_WB), s(S_W), 28672)
        g('s_add_u32', s(S_WB), s(S_WB), hex(L_XS))
        g.wait(lg0=True)
        for b, n in ((S_PHI, 25088), (S_WQKV, 1204224), (S_X, 1835008), (S_WS, WS_USED), (S_OUT, 1835008)):
            g('s_mov_b32', s(b + 2), hex(n))
            g('s_mov_b32', s(b + 3), '0x00020000')
        if OPT['stamps']:
            g('v_mov_b32', v(V_TS), 0)
            self.stamp('start')
        tphi = [g('buffer_load_dwordx4', a(128 + 4 * k, 4), v(VPH), SRD(S_PHI), s(S_T), mods=f'offen offset:{32 * k}') for k in range(2)]
        twq = [g('buffer_load_dwordx4', a(4 * k, 4), v(VWQ), SRD(S_WQKV), s(S_T + 1), mods=f'offen offset:{32 * k}') for k in range(2)]
        tep = g('buffer_load_dword', a(137), 'off', SRD(S_WS), 0, mods=f'offset:{EPOCH} sc1')
        skip = self.lab('nopf')
        g('s_cmp_ge_u32', 's2', 32)
        g('s_cbranch_scc1', skip)
        g('s_lshr_b32', s(S_T), 's2', 3)
        g('s_lshl_b32', s(S_T), s(S_T), 2)
        g('s_add_u32', s(S_T), s(S_T), s(S_W))
        g('s_lshl_b32', s(S_T), s(S_T), 12)
        g('v_lshl_add_u32', v(V_T + 4), v(V_LANE), 6, s(S_T))
        g('v_min_u32', v(V_T + 4), 'L_code_end-L_pc-4', v(V_T + 4))
        g('global_load_dword', a(136), v(V_T + 4), s(S_PC, 2))
        g.nocount(1)
        g.label(skip)
        txd = {}

        def xdma(c):
            grps = []
            for i in range(4):
                st = Stream()
                if i == 0:
                    st('s_add_u32', 'm0', s(S_WB), 4096 * c)
                t = self.stmp('C')
                st('s_add_u32', s(t), s(S_WA), 128 * c + 6144 * i)
                txd[c, i] = st('buffer_load_dwordx4', v(XA + (i & 1)), SRD(S_X), s(t), mods=f'offen offset:{1024 * i} lds')
                grps.append(st.L)
            return grps

        for c in range(3):
            self.put(g, xdma(c))
        g('s_cmp_ge_u32', s(S_J), 7)
        g('s_cselect_b32', s(S_TP), 1, 0)
        g('s_mul_i32', s(S_T), s(S_TP), 7)
        g('s_sub_u32', s(S_FP), s(S_J), s(S_T))
        g('s_mov_b32', s(S_K10), '0x3f80')
        g('s_mov_b32', s(S_K01), '0x3f800000')
        g('s_mov_b32', s(S_K11), '0x3f803f80')
        g('s_mov_b32', s(S_LO), -1)
        g('s_mov_b32', s(S_LO + 1), 0)
        g('s_mov_b32', s(S_FAST), 0)
        g('v_add_u32', v(V_L16B), 0x10000, v(V_L16))
        g('v_add_u32', v(V_L16C), 0x20000, v(V_L16))
        g('v_lshlrev_b32', v(V_L4), 2, v(V_LANE))
        g('v_lshlrev_b32', v(V_ST), 3, v(M))
        g('v_lshl_add_u32', v(V_SL), v(HI), 8, v(V_ST))
        g('v_lshl_add_u32', v(V_ST), v(HI), 2, v(V_ST))
        g('v_mul_u32_u24', v(V_XR), 896, v(M))
        g('v_lshl_add_u32', v(V_XR), v(HI), 4, v(V_XR))
        g('v_add_u32', v(DINV), -2, v(M))
        g('v_cmp_gt_u32', 'vcc', 26, v(M))
        g('v_cndmask_b32', v(DINV), v(DINV), v(M), 'vcc')
        g('v_and_b32', v(V_T + 5), 0x1a, v(M))
        g('v_cmp_eq_u32', 'vcc', 0x1a, v(V_T + 5))
        g('v_cndmask_b32', v(DINV), v(DINV), 64, 'vcc')
        VS, VP, VIN, VIC, tmp = 44, 52, 24, 32, 60
        g('v_mov_b32', v(tmp + 2), '0x3f80')
        g('v_lshlrev_b32', v(V_T + 4), 3, v(HI))
        g('v_sub_u32', v(V_T + 5), v(DINV), v(V_T + 4))
        self.onehot(g, VS, V_T + 5, False, tmp)
        SD, SC_ = 78, 79
        g('s_mul_i32', s(SD), s(S_T + 8), 87 * 1024)
        g('s_mul_i32', s(S_T), s(S_T + 10), 29 * 1024)
        g('s_add_u32', s(SD), s(SD), s(S_T))
        g('s_lshl_b32', s(S_T), s(S_T + 9), 11)
        g('s_add_u32', s(SD), s(SD), s(S_T))
        g('s_add_u32', s(SD), s(SD), hex(WQW))
        g('s_mul_i32', s(SC_), s(S_T + 8), 3)
        g('s_add_u32', s(SC_), s(SC_), s(S_T + 10))
        g('s_mul_i32', s(SC_), s(SC_), 14)
        g('s_add_u32', s(SC_), s(SC_), s(S_T + 9))
        g('s_lshl_b32', s(SC_), s(SC_), 7)
        g('s_add_u32', s(SC_), s(SC_), hex(CSW))
        g('s_cmp_ge_u32', 's2', 224)
        g('s_cselect_b32', s(S_T), 1, 0)
        g('s_cmp_eq_u32', s(S_W), 3)
        g('s_cselect_b32', s(S_T), 1, s(S_T))
        g('s_cmp_lg_u32', s(S_T), 0)
        g('s_cselect_b32', s(SD), hex(OOB), s(SD))
        g('s_cselect_b32', s(SC_), hex(OOB), s(SC_))
        g('s_mov_b32', s(80), s(S_T + 8))
        g('s_min_u32', s(81), s(S_T + 9), 15)
        g('v_lshlrev_b32', v(V_T + 6), 2, v(M))
        g.wait(tphi)
        self.mfma(g, V_ACC, a(128, 4), v(VS, 4), 0)
        self.mfma(g, V_ACC, a(132, 4), v(VS + 4, 4))
        g('s_cmp_eq_u32', s(S_W), 1)
        g('s_cselect_b64', s(S_M, 2), -1, 0)
        g.wait(tep)
        g('v_accvgpr_read_b32', v(V_T), a(137))
        g('v_readfirstlane_b32', s(S_TAG), v(V_T))
        self.pack(g, VP, V_ACC)
        for q in range(8):
            g('v_cndmask_b32', v(VP + q), v(VP + q), v(VS + q), s(S_M, 2))
        g('s_add_u32', s(S_TAG), s(S_TAG), 16)
        g.wait(twq)
        self.mfma(g, V_ACC + 16, a(0, 4), v(VP, 4), 0)
        self.mfma(g, V_ACC + 16, a(4, 4), v(VP + 4, 4))
        PK = 96
        self.pack(g, PK, V_ACC + 16)
        tst = [g('buffer_store_dwordx4', v(PK + 4 * t, 4), v(V_L16), SRD(S_WS), s(SD), mods=f'offen offset:{1024 * t} sc1') for t in range(2)]
        for q in range(8):
            g('v_dot2_f32_bf16', v(tmp), v(PK + q), s(S_K11), v(tmp) if q else 0)
        g('v_mov_b32', v(tmp + 1), v(tmp))
        g('v_permlane32_swap_b32', v(tmp), v(tmp + 1))
        g('v_add_f32', v(tmp), v(tmp), v(tmp + 1))
        tst.append(g('buffer_store_dword', v(tmp), v(V_T + 6), SRD(S_WS), s(SC_), mods='offen sc1'))
        self.stamp('unit')
        self.publish(0, T_WQ, 80, 81, tst, post=xdma(3) + xdma(4), xid=True)
        self.stamp('wqpub')
        self.put(g, xdma(5) + xdma(6))
        g('v_and_b32', v(M), 31, v(V_LANE))
        VSH = V_T + 6
        lgu, lwo, ldone, lw3 = self.lab('shgu'), self.lab('shwo'), self.lab('shdone'), self.lab('shw3')
        g.fence()
        g('s_cmp_lt_u32', 's2', 112)
        g('s_cbranch_scc1', lgu)
        g('s_and_b32', s(S_T), 's2', 1)
        g('s_mul_i32', s(S_T), s(S_T), 7)
        g('s_add_u32', s(S_T), s(S_T), s(S_W))
        g('s_mov_b32', s(S_SRC + 2), hex(OOB))
        g('s_mov_b32', s(S_SRC + 3), hex(OOB))
        g('s_mov_b32', s(S_DST + 2), hex(OOB))
        g('s_mov_b32', s(S_DST + 3), hex(OOB))
        g('s_mov_b32', s(S_XDST), hex(OOB))
        g('s_cmp_ge_u32', 's2', 224)
        g('s_cbranch_scc1', lwo)
        g('s_mov_b64', s(S_SH, 2), s(S_PWD, 2))
        g('s_mov_b32', s(S_SH + 2), hex(1605632))
        g('s_sub_u32', s(S_T + 1), 's2', 112)
        g('s_lshr_b32', s(S_T + 1), s(S_T + 1), 1)
        g('s_mul_i32', s(S_SRC), s(S_T + 1), 32 * 896)
        g('s_lshl_b32', s(S_T + 2), s(S_T), 6)
        g('s_add_u32', s(S_SRC), s(S_SRC), s(S_T + 2))
        g('s_mul_i32', s(S_DST), s(S_T), 112 * 1024)
        g('s_lshl_b32', s(S_T + 1), s(S_T + 1), 11)
        g('s_add_u32', s(S_DST), s(S_DST), s(S_T + 1))
        g('s_add_u32', s(S_DST), s(S_DST), hex(WDN))
        g('s_add_u32', s(S_SRC + 1), s(S_SRC), 4 * 64)
        g('s_add_u32', s(S_DST + 1), s(S_DST), 4 * 112 * 1024)
        g('v_mov_b32', v(VSH), v(V_XR))
        g('s_branch', lw3)
        g.label(lwo)
        g('s_mov_b64', s(S_SH, 2), s(S_PWO, 2))
        g('s_mov_b32', s(S_SH + 2), hex(401408))
        g('s_sub_u32', s(S_T + 1), 's2', 224)
        g('s_lshr_b32', s(S_T + 1), s(S_T + 1), 1)
        g('s_mul_i32', s(S_SRC), s(S_T + 1), 28 * 896)
        g('s_lshl_b32', s(S_T + 2), s(S_T), 6)
        g('s_add_u32', s(S_SRC), s(S_SRC), s(S_T + 2))
        g('s_mul_i32', s(S_DST), s(S_T), 32 * 1024)
        g('s_lshl_b32', s(S_T + 1), s(S_T + 1), 11)
        g('s_add_u32', s(S_DST), s(S_DST), s(S_T + 1))
        g('s_add_u32', s(S_DST), s(S_DST), hex(WO_))
        g('s_add_u32', s(S_SRC + 1), s(S_SRC), 4 * 64)
        g('s_add_u32', s(S_DST + 1), s(S_DST), 4 * 32 * 1024)
        g('v_mul_u32_u24', v(VSH), 896, v(DINV))
        g('v_add_u32', v(VSH), v(VSH), v(H16))
        g('v_cmp_gt_u32', 'vcc', 64, v(DINV))
        g('v_mov_b32', v(V_T + 4), hex(OOB))
        g('v_cndmask_b32', v(VSH), v(V_T + 4), v(VSH), 'vcc')
        g.label(lw3)
        g('s_cmp_eq_u32', s(S_W), 3)
        g('s_cselect_b32', s(S_SRC + 1), hex(OOB), s(S_SRC + 1))
        g('s_cselect_b32', s(S_DST + 1), hex(OOB), s(S_DST + 1))
        g('s_branch', ldone)
        g.label(lgu)
        g('s_and_b32', s(S_T + 1), 's2', 7)
        g('s_mul_i32', s(S_T + 1), s(S_T + 1), 14)
        g('s_lshr_b32', s(S_T + 2), 's2', 3)
        g('s_add_u32', s(S_T + 1), s(S_T + 1), s(S_T + 2))
        g('s_bitcmp1_b32', s(S_T + 1), 1)
        g('s_cselect_b64', s(S_SH, 2), s(S_PWU, 2), s(S_PWG, 2))
        g('s_cselect_b32', s(S_T + 3), 1, 0)
        g('s_mov_b32', s(S_SH + 2), hex(1605632))
        g('s_lshr_b32', s(S_T), s(S_T + 1), 2)
        g('s_lshl_b32', s(S_T), s(S_T), 1)
        g('s_and_b32', s(S_T + 1), s(S_T + 1), 1)
        g('s_add_u32', s(S_T), s(S_T), s(S_T + 1))
        g('s_lshl_b32', s(S_T + 1), s(S_T), 1)
        g('s_add_u32', s(S_T + 1), s(S_T + 1), s(S_T + 3))
        g('s_lshl_b32', s(S_T), s(S_T), 6)
        g('s_mul_i32', s(S_SRC), s(S_W), 32 * 3584)
        g('s_add_u32', s(S_SRC), s(S_SRC), s(S_T))
        g('s_mul_i32', s(S_XDST), s(S_T + 1), 29 * 1024)
        g('s_add_u32', s(S_XDST), s(S_XDST), hex(WGU))
        g('s_lshl_b32', s(S_T), s(S_W), 11)
        g('s_add_u32', s(S_DST), s(S_XDST), s(S_T))
        g('s_add_u32', s(S_XDST), s(S_XDST), 28 * 1024)
        for i in range(1, 4):
            g('s_add_u32', s(S_SRC + i), s(S_SRC + i - 1), 4 * 32 * 3584)
            g('s_add_u32', s(S_DST + i), s(S_DST + i - 1), 8 * 1024)
        g('s_cmp_ge_u32', s(S_W), 2)
        g('s_cselect_b32', s(S_DST + 3), hex(OOB), s(S_DST + 3))
        g('s_cmp_lg_u32', s(S_W), 0)
        g('s_cselect_b32', s(S_XDST), hex(OOB), s(S_XDST))
        g('v_mul_u32_u24', v(VSH), 3584, v(PI))
        g('v_add_u32', v(VSH), v(VSH), v(H16))
        g.label(ldone)
        g('s_mov_b32', s(S_SH + 3), '0x00020000')
        self.tsh, self.gsh = [], []
        for i in range(4):
            tk = []
            for k in range(2):
                x = Stream()
                tk.append(x('buffer_load_dwordx4', a(96 + 8 * i + 4 * k, 4), v(VSH), SRD(S_SH), s(S_SRC + i), mods=f'offen offset:{32 * k}'))
                self.gsh.append(x.L)
            self.tsh.append(tk)
        g('s_lshl_b32', s(S_T), s(S_J), 2)
        g('s_add_u32', s(S_T), s(S_T), s(S_W))
        g('s_mul_i32', s(S_BWGU), s(S_T), 2 * 29 * 1024)
        g('s_add_u32', s(S_BWGU), s(S_BWGU), hex(WGU))
        g('s_lshr_b32', s(S_T + 1), s(S_W), 1)
        g('s_lshl_b32', s(S_T), s(S_FP), 1)
        g('s_add_u32', s(S_T), s(S_T), s(S_T + 1))
        g('s_xor_b32', s(S_T + 1), s(S_T), 1)
        g('s_lshl_b32', s(S_T + 2), s(S_W), 13)
        g('s_add_u32', s(S_T + 2), s(S_T + 2), hex(WO_))
        g('s_mul_i32', s(S_T + 3), s(S_W), 28 * 1024)
        g('s_add_u32', s(S_T + 3), s(S_T + 3), hex(WDN))
        for k, (bo, bd) in enumerate(((S_BWO, S_BWDN), (S_BWO1, S_BWDN1))):
            g('s_lshl_b32', s(bo), s(S_T + k), 15)
            g('s_add_u32', s(bo), s(bo), s(S_T + 2))
            g('s_mul_i32', s(bd), s(S_T + k), 112 * 1024)
            g('s_add_u32', s(bd), s(bd), s(S_T + 3))
        g('s_cmp_ge_u32', s(S_J), 14)
        for b in (S_BWGU, S_BWO, S_BWO1, S_BWDN, S_BWDN1):
            g('s_cselect_b32', s(b), hex(OOB), s(b))
        g('v_lshlrev_b32', v(V_T + 4), 3, v(HI))
        g('v_sub_u32', v(V_T + 5), v(M), v(V_T + 4))
        self.onehot(g, VIN, V_T + 5, False, tmp)
        g('v_lshlrev_b32', v(V_T + 4), 2, v(HI))
        g('v_sub_u32', v(V_T + 5), v(M), v(V_T + 4))
        self.onehot(g, VIC, V_T + 5, True, tmp)
        g('v_and_b32', v(V_T + 4), 0x3b, v(V_LANE))
        g('v_cmp_eq_u32', 'vcc', 26, v(V_T + 4))
        g('v_cndmask_b32', v(63), 0, v(tmp + 2), 'vcc')
        g('s_cmp_eq_u32', s(S_W), 1)
        g('s_cselect_b32', s(S_T), -1, 0)
        g('v_and_b32', v(63), s(S_T), v(63))
        XR = 40
        g('v_lshrrev_b32', v(V_T + 4), 1, v(M))
        g('v_and_b32', v(V_T + 4), 7, v(V_T + 4))
        g('v_xor_b32', v(V_T + 4), v(V_T + 4), v(HI))
        g('v_lshlrev_b32', v(V_T + 4), 4, v(V_T + 4))
        g('v_lshl_add_u32', v(V_T + 4), v(M), 7, v(V_T + 4))
        g('v_add_u32', v(XR), s(S_WB), v(V_T + 4))
        for k in range(1, 4):
            g('v_xor_b32', v(XR + k), 32 * k, v(XR))
        g('v_lshlrev_b32', v(V_T + 5), 2, v(M))
        g('v_lshl_add_u32', v(V_T + 5), v(HI), 7, v(V_T + 5))
        for c in range(7):
            g.wait([txd[c, i] for i in range(4)])
            for k in range(4):
                g('ds_read_b128', v(V_BIG + 16 * c + 4 * k, 4), v(XR + k), mods=f'offset:{4096 * c}')
        g.wait(lg0=True)
        self.stamp('xrd')
        self.poll(0, T_WQ, S_J, 14)
        self.stamp('wqok')
        self.VIN, self.VIC = VIN, VIC

    def q0_main(self):
        g = self.g
        AK, AV, RING, XF = V_ACC, V_ACC + 16, V_ACC + 32, V_BIG
        VIN, VIC = self.VIN, self.VIC
        g('s_lshr_b32', s(S_T), s(S_W), 1)
        g('s_mul_i32', s(S_T), s(S_T), 29 * 1024)
        g('s_and_b32', s(S_T + 1), s(S_W), 1)
        g('s_lshl_b32', s(S_T + 2), s(S_T + 1), 12)
        g('s_add_u32', s(S_WB), s(S_T), s(S_T + 2))
        g('s_lshl_b32', s(S_T + 2), s(S_T + 1), 11)
        g('s_add_u32', s(78), s(S_T), s(S_T + 2))
        g('s_mul_i32', s(S_WA), s(S_J), 87 * 1024)
        g('s_add_u32', s(S_WA), s(S_WA), hex(WQW))
        g('s_mul_i32', s(79), s(S_W), 7 * 1024)
        g('s_add_u32', s(79), s(79), L_WQ)
        g('s_min_u32', s(S_T), s(S_W), 2)
        g('s_mul_i32', s(80), s(S_J), 3)
        g('s_add_u32', s(80), s(80), s(S_T))
        g('s_mul_i32', s(80), s(80), 14 * 128)
        g('s_add_u32', s(80), s(80), hex(CSW))
        g('s_mul_i32', s(81), s(S_T), 29 * 1024)
        g('s_add_u32', s(81), s(81), 28 * 1024)

        def dma(base, const, n):
            grps, toks = [], []
            for k in range(n):
                st = Stream()
                if k == 0:
                    t = self.stmp('C')
                    st('s_add_u32', 'm0', s(base), const)
                    st('s_add_u32', s(t), 'm0', s(S_WA))
                toks.append(st('buffer_load_dwordx4', v(V_L16), SRD(S_WS), s(t), mods=f'offen offset:{1024 * k} sc1 lds'))
                grps.append(st.L)
            return grps, toks

        td, bg = [], []
        for c in range(3):
            gr, tk = dma(S_WB, 8192 * c, 4)
            bg += gr
            td.append(tk)
        gr, tk = dma(78, 24 * 1024, 2)
        bg += gr
        td.append(tk)
        CV = 56
        tcs = []
        for i in range(7):
            st = Stream()
            tcs.append(st('buffer_load_dword', v(CV + i), v(V_T + 5), SRD(S_WS), s(80), mods=f'offen offset:{256 * i} sc1'))
            bg.append(st.L)
        self.put(g, bg[:4])
        bg = bg[4:]
        st = Stream()
        self.dsw(st, L_IC, v(VIC, 4))
        self.dsw(st, L_IC + 1024, v(VIC + 4, 4))
        S1, S2 = 250, 251
        for t in range(28):
            for q in range(4):
                first = t == 0 and q == 0
                st('v_dot2_f32_bf16', v(S1), v(V_BIG + 4 * t + q), s(S_K11), 0 if first else v(S1))
                st('v_dot2_f32_bf16', v(S2), v(V_BIG + 4 * t + q), v(V_BIG + 4 * t + q), 0 if first else v(S2))
        self.q_stats_finish(st, S1, S2)
        self.emit(st, bg, spacing=48)
        self.stamp('stats')
        side = list(self.gsh)
        x = Stream()
        x.wait(tcs)
        for i in range(1, 7):
            x('v_add_f32', v(CV), v(CV), v(CV + i))
        x('v_mov_b32', v(CV + 1), v(CV))
        x('v_permlane32_swap_b32', v(CV), v(CV + 1))
        x('v_add_f32', v(CV), v(CV), v(CV + 1))
        self.cs_to_frag(x, CV, 63)
        x('v_add_u32', v(V_T), s(81), v(V_L16))
        text = x('ds_write_b128', v(V_T), v(CV, 4))
        ext_wq = x.L
        gq, tq = dma(79, 0, 4)
        gq2, tq2 = dma(79, 4096, 3)
        self.tq_dma = tq + tq2
        qd = gq + gq2

        D = 3
        rd = {}

        def reads(m, t):
            for k, base in enumerate((L_WK, L_WV)):
                rd[t, k] = self.dsr(m, v(RING + 8 * (t % 4) + 4 * k, 4), base + t * 1024)

        g.wait(td[0], lg0=True)
        g('s_barrier')
        for t in range(D):
            reads(g, t)
        for t in range(29):
            g.wait(rd[t, 0], rd[t, 1])
            B = v(XF + 4 * t, 4)
            self.mfma(g, AK, v(RING + 8 * (t % 4), 4), B, 0 if t == 0 else None)
            if side:
                g.L += side.pop(0)
            elif t >= 21 and qd:
                g.L += qd.pop(0)
            self.mfma(g, AV, B, v(RING + 8 * (t % 4) + 4, 4), 0 if t == 0 else None)
            if t == 13:
                g.L += ext_wq
            if t in (4, 12, 20):
                g.wait(td[t // 8 + 1], text if t == 20 else None)
                g('s_barrier')
            if t + D < 29:
                reads(g, t + D)
        assert not side and not qd

    def shuffle(self, tkv):
        g = self.g
        VIN = self.VIN
        CS = V_T + 6
        PK = [32, 40, 48, 112]
        DD = [V_ACC, V_ACC + 16]
        ts = []

        def mm(i):
            g.wait(self.tsh[i])
            self.mfma(g, DD[i % 2], a(96 + 8 * i, 4), v(VIN, 4), 0)
            self.mfma(g, DD[i % 2], a(96 + 8 * i + 4, 4), v(VIN + 4, 4))

        mm(0)
        for i in range(4):
            if i + 1 < 4:
                mm(i + 1)
            self.pack(g, PK[i], DD[i % 2])
            for t in range(2):
                ts.append(g('buffer_store_dwordx4', v(PK[i] + 4 * t, 4), v(V_L16), SRD(S_WS), s(S_DST + i), mods=f'offen offset:{1024 * t} sc1'))
                for q in range(4 * t, 4 * t + 4):
                    g('v_dot2_f32_bf16', v(CS), v(PK[i] + q), s(S_K11), v(CS) if (i or q) else 0)
        g('s_lshl_b32', s(S_T + 8), s(S_W), 8)
        g('s_add_u32', s(S_T + 8), s(S_T + 8), hex(L_CSP))
        g('v_add_u32', v(V_T), s(S_T + 8), v(V_L4))
        g('ds_write_b32', v(V_T), v(CS))
        g.wait(tkv, lg0=True)
        g('s_barrier')
        self.flag_store(0, T_KV, S_J, S_RB)
        ts.append(self.sh_ext(g))
        return ts

    def sh_ext(self, g):
        R = 56
        g('v_and_b32', v(V_T + 3), 31, v(V_LANE))
        g('v_lshlrev_b32', v(V_T + 3), 2, v(V_T + 3))
        g('v_add_u32', v(V_T + 3), hex(L_CSP), v(V_T + 3))
        tk = [g('ds_read2_b32', v(R + 2 * k, 2), v(V_T + 3), mods=f'offset0:{64 * k} offset1:{64 * k + 32}') for k in range(4)]
        g.wait(tk)
        for k in range(1, 8):
            g('v_add_f32', v(R), v(R), v(R + k))
        self.cs_to_frag(g, R, None)
        return g('buffer_store_dwordx4', v(R, 4), v(V_L16), SRD(S_WS), s(S_XDST), mods='offen sc1')

    def q1_main(self):
        g = self.g
        AK, AV, RING, XF = V_ACC, V_ACC + 16, V_ACC + 32, V_BIG
        ST = 40
        tst = self.stat_loads(g, ST, LB(0) + o_ST2)
        g('s_lshl_b32', s(S_WA), s(S_RB), 2)
        g('s_add_u32', s(S_WA), s(S_WA), s(S_W))
        g('s_mul_i32', s(S_WA), s(S_WA), 28 * 1024)
        g('s_add_u32', s(S_WA), s(S_WA), hex(LB(0) + o_X2))
        gx, tx = self.fgroups([(v(XF + 4 * t, 4), S_WA, 1024 * t) for t in range(28)], sc1=True, pool='C')
        PRE = 10
        self.put(g, gx[:PRE])
        D = 3
        rd = {}

        def reads(t):
            for k, base in enumerate((L_WK, L_WV)):
                rd[t, k] = self.dsr(g, v(RING + 8 * (t % 4) + 4 * k, 4), base + t * 1024)

        for t in range(D):
            reads(t)
        g.wait(tst)
        self.stat_sum(g, ST)
        self.q_stats_finish(g, ST, ST + 1)
        for t in range(29):
            g.wait(tx[t] if t < 28 else None, rd[t, 0], rd[t, 1])
            B = v(XF + 4 * t, 4)
            self.mfma(g, AK, v(RING + 8 * (t % 4), 4), B, 0 if t == 0 else None)
            if t + PRE < 28:
                g.L += gx[t + PRE]
            elif t >= 20:
                self.put(g, self.wtake('wgu_q', 1))
            self.mfma(g, AV, B, v(RING + 8 * (t % 4) + 4, 4), 0 if t == 0 else None)
            if t + D < 29:
                reads(t + D)

    def phase_q(self, L):
        g = self.g
        AK, AV, RING, XF = V_ACC, V_ACC + 16, V_ACC + 32, V_BIG
        if L == 0:
            self.wq_reset()
            self.q0_main()
        else:
            self.q1_main()
        self.stamp(f'qmm{L}')
        st = Stream()
        IC = RING + 8 * (29 % 4)
        tic = [self.dsr(st, v(IC + 4 * k, 4), L_IC + 1024 * k) for k in range(2)]
        E, F = 40, 112
        self.phi(st, AK, E, V_T, F, VSC, extra=VR)
        DP, DM = AK, E
        st.wait(tic)
        self.mfma(st, DP, v(F, 4), v(IC, 4), 0)
        self.mfma(st, DM, v(F + 8, 4), v(IC, 4), 0)
        self.mfma(st, DP, v(F + 4, 4), v(IC + 4, 4))
        self.mfma(st, DM, v(F + 12, 4), v(IC + 4, 4))
        VV = 56
        self.pack(st, VV, AV)
        G = 96
        self.pack(st, G, DP)
        self.pack(st, G + 8, DM)
        KP, KM = AK, AV
        self.mfma(st, KP, v(G, 4), v(VV, 4), 0)
        self.mfma(st, KM, v(G + 8, 4), v(VV, 4), 0)
        self.mfma(st, KP, v(G + 4, 4), v(VV + 4, 4))
        self.mfma(st, KM, v(G + 12, 4), v(VV + 4, 4))
        VW = V_T + 4
        st('s_lshl_b32', s(S_T + 8), s(S_W), 13)
        st('s_add_u32', s(S_T + 8), s(S_T + 8), hex(L_KVS))
        st('v_add_u32', v(VW), s(S_T + 8), v(V_L16))
        st('s_lshl_b32', s(S_T + 8), s(S_W), 11)
        st('s_add_u32', s(S_T + 8), s(S_T + 8), hex(L_KVS))
        st('v_add_u32', v(VW + 1), s(S_T + 8), v(V_L16))
        for k in range(8):
            st('ds_write_b128', v(VW), v(KP + 4 * k, 4), mods=f'offset:{1024 * k}')
        self.emit(st, self.wtake('wgu_q', 8) if L else (), spacing=90, start=0, stop=800)
        if L == 0:
            g.wait(self.tq_dma, lg0=True)
        else:
            g.wait(lg0=True)
        g('s_barrier')
        R = 96
        tk = [g('ds_read_b128', v(R + 4 * k, 4), v(VW + 1), mods=f'offset:{8192 * (k // 2) + 1024 * (k % 2)}') for k in range(8)]
        g('s_lshl_b32', s(S_T + 8), s(S_J), 16)
        g('s_lshl_b32', s(S_T + 9), s(S_RB), 12)
        g('s_add_u32', s(S_T + 8), s(S_T + 8), s(S_T + 9))
        g('s_lshl_b32', s(S_T + 9), s(S_W), 10)
        g('s_add_u32', s(S_T + 8), s(S_T + 8), s(S_T + 9))
        g('s_add_u32', s(S_T + 8), s(S_T + 8), hex(LB(L) + o_KVP))
        g.wait(tk[:4])
        for q in range(4):
            g('v_pk_add_f32', v(R + 2 * q, 2), v(R + 2 * q, 2), v(R + 8 + 2 * q, 2))
        g.wait(tk[4:])
        for q in range(4):
            g('v_pk_add_f32', v(R + 16 + 2 * q, 2), v(R + 16 + 2 * q, 2), v(R + 24 + 2 * q, 2))
        for q in range(4):
            g('v_pk_add_f32', v(R + 2 * q, 2), v(R + 2 * q, 2), v(R + 16 + 2 * q, 2))
        self.pack(g, R + 8, R, 4)
        tkv = g('buffer_store_dwordx4', v(R + 8, 4), v(V_L16), SRD(S_WS), s(S_T + 8), mods='offen sc1')
        self.stamp(f'kvst{L}')
        AQ = AK
        rq = {}
        QR = V_ACC + 32 + 16
        if L == 0:
            tshs = self.shuffle(tkv)
            self.stamp('shuf')
        st = Stream()
        self.own_touch(st, L)
        for t in range(3):
            rq[t] = self.dsr(st, v(QR + 4 * (t % 4), 4), L_WQ + t * 1024)
        for t in range(29):
            st.wait(rq[t])
            self.mfma(st, AQ, v(QR + 4 * (t % 4), 4), v(XF + 4 * t, 4), 0 if t == 0 else None)
            if t + 3 < 29:
                rq[t + 3] = self.dsr(st, v(QR + 4 * ((t + 3) % 4), 4), L_WQ + (t + 3) * 1024)
            if t == 22 and L == 1:
                self.emit(st, self.wtake('wgu_q', 8), spacing=90)
                g.wait(tkv)
                g('s_barrier')
                self.flag_store(L, T_KV, S_J, S_RB)
                st = Stream()
        self.emit(st)
        if L == 0:
            g.wait(tshs)
            g('s_barrier')
            self.flag_store(0, T_SH, S_RB, S_J)
            self.res_loads()
        self.stamp(f'kvpub{L}')
        st = Stream()
        self.phi(st, AQ, E, V_T, V_PHQ, VSC)
        self.emit(st, self.wtake('wo_q', 10) if L else (), spacing=64)
        self.stamp(f'phiq{L}')
        if L == 0:
            self.poll_xid()
        else:
            self.put(g, self.wtake('wo_q', 6))
            self.put(g, self.wtake('wgu_q', 2))
        self.poll(L, T_KV, S_J, 16)
        self.stamp(f'kvok{L}')

    def own_touch(self, g, L):
        if not OPT['touch']:
            return
        g('v_and_b32', v(V_T + 2), 3, v(V_LANE))
        g('v_lshlrev_b32', v(V_T + 2), 11, v(V_T + 2))
        g('s_lshl_b32', s(S_T + 8), s(S_RB), 7)
        g('s_add_u32', s(S_T + 8), s(S_T + 8), hex(self.flag_off(L, 0)))
        g('buffer_load_dword', a(253), v(V_T + 2), SRD(S_WS), s(S_T + 8), mods='offen')
        if L == 1:
            return
        g('v_and_b32', v(V_T + 2), 15, v(V_LANE))
        g('v_lshlrev_b32', v(V_T + 2), 7, v(V_T + 2))
        t = S_T + 8
        g('s_lshl_b32', s(t), s(S_RB), 2)
        g('s_add_u32', s(t), s(t), s(S_W))
        g('s_lshl_b32', s(t), s(t), 15)
        g('s_lshl_b32', s(t + 1), s(S_J), 11)
        g('s_add_u32', s(t), s(t), s(t + 1))
        g('s_add_u32', s(t), s(t), hex(LB(0) + o_O))
        g('buffer_load_dword', a(250), v(V_T + 2), SRD(S_WS), s(t), mods='offen')
        self.own_tile_offsets(g, LB(0) + o_X1, LB(0) + o_ST1)
        g('s_cmp_ge_u32', s(S_J), 14)
        g('s_cselect_b32', s(S_T + 8), hex(OOB), s(S_T + 8))
        g('s_cselect_b32', s(S_T + 10), hex(OOB), s(S_T + 10))
        g('buffer_load_dword', a(251), v(V_T + 2), SRD(S_WS), s(S_T + 8), mods='offen')
        g('buffer_load_dword', a(252), v(V_L4), SRD(S_WS), s(S_T + 10), mods='offen')

    def res_loads(self):
        g = self.g
        self.tb_base(g, S_T + 8, 32 * 896, 0, 0)
        g('s_lshl_b32', s(S_T + 9), s(S_FP), 7)
        g('s_add_u32', s(S_T + 8), s(S_T + 8), s(S_T + 9))
        g('s_lshr_b32', s(S_T + 9), s(S_W), 1)
        g('s_lshl_b32', s(S_T + 9), s(S_T + 9), 6)
        g('s_add_u32', s(S_T + 8), s(S_T + 8), s(S_T + 9))
        g('v_lshrrev_b32', v(V_T + 2), 5, v(V_LANE))
        g('v_lshlrev_b32', v(V_T + 2), 3, v(V_T + 2))
        g('v_sub_u32', v(V_T + 2), v(V_XR), v(V_T + 2))
        self.tres = [g('buffer_load_dwordx2', v(V_RES + 2 * jj, 2), v(V_T + 2), SRD(S_X), s(S_T + 8), mods=f'offen offset:{16 * jj}')
                     for jj in range(4)]

    def poll_xid(self):
        g = self.g
        loop, done = self.lab('xpoll'), self.lab('xdone')
        g.fence()
        g('s_lshl_b32', s(S_T + 8), s(S_RB), 10)
        g('s_add_u32', s(S_T + 8), s(S_T + 8), hex(self.flag_off(0, T_XID)))
        g('v_and_b32', v(V_T + 1), 15, v(V_LANE))
        g('v_lshlrev_b32', v(V_T + 1), 6, v(V_T + 1))
        g('s_mov_b32', s(S_CNT), 0)
        g.label(loop)
        g('buffer_load_dword', v(V_T), v(V_T + 1), SRD(S_WS), s(S_T + 8), mods='offen sc1')
        g.nocount(1)
        g.raw('  s_waitcnt vmcnt(0)')
        g('v_subrev_u32', v(V_T), s(S_TAG), v(V_T))
        g('v_cmp_lt_u32', 'vcc', 15, v(V_T))
        g('s_add_u32', s(S_CNT), s(S_CNT), 1)
        g('s_nop', 1)
        g('s_cbranch_vccz', done)
        g('s_cmp_lt_u32', s(S_CNT), 0x40000)
        g('s_cbranch_scc1', loop)
        g.label(done)
        g.wait(vm0=True)
        g('v_cmp_ne_u32', 'vcc', s(S_XCC), v(V_T))
        g('s_cmp_eq_u64', 'vcc', 0)
        g('s_cselect_b32', s(S_FAST), 1, 0)

    def sh_poll_issue(self, g):
        g('s_lshl_b32', s(S_WB), s(S_W), 12)
        g('s_add_u32', s(S_WB), s(S_WB), hex(self.flag_off(0, T_SH)))
        g('v_lshlrev_b32', v(V_T + 3), 6, v(V_LANE))
        return g('buffer_load_dword', v(V_T + 2), v(V_T + 3), SRD(S_WS), s(S_WB), mods='offen sc1')

    def sh_poll_check(self, tok):
        g = self.g
        loop, done = self.lab('shpoll'), self.lab('shdone')
        g.wait(tok)
        g('s_mov_b32', s(S_CNT), 0)
        g.fence()
        g.label(loop)
        g('v_cmp_ne_u32', 'vcc', s(S_TAG), v(V_T + 2))
        g('s_add_u32', s(S_CNT), s(S_CNT), 1)
        g('s_nop', 1)
        g('s_cbranch_vccz', done)
        g('buffer_load_dword', v(V_T + 2), v(V_T + 3), SRD(S_WS), s(S_WB), mods='offen sc1')
        g.nocount(1)
        g.raw('  s_waitcnt vmcnt(0)')
        g('s_cmp_lt_u32', s(S_CNT), 0x40000)
        g('s_cbranch_scc1', loop)
        g.label(done)

    def epoch_bump(self):
        g = self.g
        skip = self.lab('noep')
        g('s_or_b32', s(S_T + 8), 's2', s(S_W))
        g('s_cmp_lg_u32', s(S_T + 8), 0)
        g('s_cbranch_scc1', skip)
        g('v_mov_b32', v(V_T + 2), s(S_TAG))
        g('s_mov_b64', 'exec', 1)
        g('buffer_store_dword', v(V_T + 2), v(V_L4), SRD(S_WS), 0, mods=f'offen offset:{EPOCH} sc1')
        g.nocount(1)
        g('s_mov_b64', 'exec', -1)
        g.fence()
        g.label(skip)

    def phase_o(self, L):
        g = self.g
        PF = V_BIG
        g('s_lshl_b32', s(S_WA), s(S_J), 16)
        g('s_lshl_b32', s(S_T + 8), s(S_W), 10)
        g('s_add_u32', s(S_WA), s(S_WA), s(S_T + 8))
        g('s_add_u32', s(S_WA), s(S_WA), hex(LB(L) + o_KVP))
        gp, tp = self.fgroups([(v(PF + 4 * n, 4), S_WA, 4096 * n) for n in range(16)], sc1=True)
        self.put(g, gp)
        if L == 0:
            tsp = self.sh_poll_issue(g)
        S = 40
        st = Stream()
        for n in range(16):
            st.wait(tp[n])
            for q in range(4):
                st('v_dot2_f32_bf16', v(S + 2 * q), v(PF + 4 * n + q), s(S_K10), v(S + 2 * q) if n else 0)
                st('v_dot2_f32_bf16', v(S + 2 * q + 1), v(PF + 4 * n + q), s(S_K01), v(S + 2 * q + 1) if n else 0)
        self.emit(st, self.wtake('wgu_q', 4) if L else (), spacing=64)
        self.pack(g, S + 8, S, 4)
        g('s_lshl_b32', s(S_T + 8), s(S_W), 10)
        g('s_add_u32', s(S_T + 8), s(S_T + 8), hex(L_KVF))
        g('v_add_u32', v(V_T), s(S_T + 8), v(V_L16))
        g('ds_write_b128', v(V_T), v(S + 8, 4))
        if L == 0:
            self.sh_poll_check(tsp)
        g.wait(lg0=True)
        g('s_barrier')
        KV = 96
        tk = [self.dsr(g, v(KV + 4 * k, 4), L_KVF + 1024 * k) for k in range(4)]
        O = V_ACC
        g('s_lshl_b32', s(S_T + 8), s(S_RB), 2)
        g('s_add_u32', s(S_T + 8), s(S_T + 8), s(S_W))
        g('s_lshl_b32', s(S_T + 8), s(S_T + 8), 15)
        g('s_lshl_b32', s(S_T + 9), s(S_J), 11)
        g('s_add_u32', s(S_T + 8), s(S_T + 8), s(S_T + 9))
        g('s_add_u32', s(S_T + 8), s(S_T + 8), hex(LB(L) + o_O))
        for k in range(4):
            g.wait(tk[k])
            self.mfma(g, O, v(KV + 4 * k, 4), v(V_PHQ + 4 * k, 4), 0 if k == 0 else None)
        g('v_add_f32', v(V_T), fbits(1e-6), v(O + 14))
        g('v_rcp_f32', v(V_T), v(V_T))
        g('v_mov_b32', v(S + 7), 0)
        for r in range(0, 14, 2):
            g('v_pk_mul_f32', v(O + r, 2), v(O + r, 2), v(V_T, 2), mods='op_sel:[0,0] op_sel_hi:[1,0]')
        self.pack(g, S, O, 7)
        ts = self.alt_stores(g, [('buffer_store_dwordx4', v(S + 4 * t, 4), v(V_L16), SRD(S_WS), s(S_T + 8), f'offen offset:{1024 * t}') for t in range(2)])
        self.stamp(f'ost{L}')
        self.publish(L, T_O, S_RB, S_J, ts, post=self.wtake('wo_q', 8) if L == 0 else self.wtake('wgu_q', 4))
        if L == 0:
            self.put(g, self.wtake('wo_q', 8))
            self.epoch_bump()
        self.stamp(f'opub{L}')

    def tb_base(self, g, dst, stride, const, atb):
        g('s_and_b32', s(dst), s(S_W), 1)
        if atb:
            g('s_xor_b32', s(dst), s(dst), 1)
        g('s_lshl_b32', s(dst), s(dst), 1)
        g('s_add_u32', s(dst), s(dst), s(S_TP))
        g('s_lshl_b32', s(S_T + 11), s(S_RB), 2)
        g('s_add_u32', s(dst), s(dst), s(S_T + 11))
        g('s_mul_i32', s(dst), s(dst), hex(stride))
        if const:
            g('s_add_u32', s(dst), s(dst), hex(const))

    def own_tile_offsets(self, g, x_off, st_off):
        fbw = S_T + 9
        g('s_lshl_b32', s(fbw), s(S_FP), 1)
        g('s_lshr_b32', s(S_T + 8), s(S_W), 1)
        g('s_add_u32', s(fbw), s(fbw), s(S_T + 8))
        self.tb_base(g, S_T + 8, 28 * 1024, x_off, 0)
        self.tb_base(g, S_T + 10, 14 * 256, st_off, 0)
        g('s_lshl_b32', s(S_T + 11), s(fbw), 11)
        g('s_add_u32', s(S_T + 8), s(S_T + 8), s(S_T + 11))
        g('s_lshl_b32', s(S_T + 11), s(fbw), 8)
        g('s_add_u32', s(S_T + 10), s(S_T + 10), s(S_T + 11))

    def red_addr(self, g):
        VW = V_T + 3
        for aa in range(1, 4):
            g('s_xor_b32', s(S_T + 8), s(S_W), aa)
            g('s_mul_i32', s(S_T + 8), s(S_T + 8), 12288)
            g('s_add_u32', s(S_T + 8), s(S_T + 8), hex(L_RED + 4096 * (aa - 1)))
            g('v_add_u32', v(VW + aa - 1), s(S_T + 8), v(V_L16))
        g('s_mul_i32', s(S_T + 8), s(S_W), 12288)
        g('s_add_u32', s(S_T + 8), s(S_T + 8), hex(L_RED))
        g('v_add_u32', v(VW + 3), s(S_T + 8), v(V_L16))

    def reduce_epilogue(self, L, x_off, st_off, final, bg=()):
        g = Stream()
        A = V_ACC
        VW = V_T + 3
        for aa in range(1, 4):
            for k in range(4):
                g('ds_write_b128', v(VW + aa - 1), v(A + 16 * aa + 4 * k, 4), mods=f'offset:{1024 * k}')
        for q in range(8):
            g('v_dot2_f32_bf16', v(A + 2 * q), v(V_RES + q), s(S_K10), v(A + 2 * q))
            g('v_dot2_f32_bf16', v(A + 2 * q + 1), v(V_RES + q), s(S_K01), v(A + 2 * q + 1))
        g.wait(lg0=True)
        g('s_barrier')
        tk = [g('ds_read_b128', v(A + 16 + 4 * k, 4), v(VW + 3), mods=f'offset:{1024 * k}') for k in range(12)]
        if final:
            fbw = S_T + 9
            g('s_lshl_b32', s(fbw), s(S_FP), 1)
            g('s_lshr_b32', s(S_T + 8), s(S_W), 1)
            g('s_add_u32', s(fbw), s(fbw), s(S_T + 8))
            self.tb_base(g, S_T + 8, 32 * 896, 0, 0)
            g('s_lshl_b32', s(fbw), s(fbw), 6)
            g('s_add_u32', s(S_T + 8), s(S_T + 8), s(fbw))
        else:
            self.own_tile_offsets(g, x_off, st_off)
        for b in range(3):
            g.wait(tk[4 * b:4 * b + 4])
            for q in range(8):
                g('v_pk_add_f32', v(A + 2 * q, 2), v(A + 2 * q, 2), v(A + 16 + 16 * b + 2 * q, 2))
        N = 40
        self.pack(g, N, A)
        if not final:
            self.pack(g, V_RES, A)
        for k in (0, 1, 4, 5):
            g('v_permlane32_swap_b32', v(N + k), v(N + k + 2))
        if final:
            for t in range(2):
                g('buffer_store_dwordx4', v(N + 4 * t, 4), v(V_XR), SRD(S_OUT), s(S_T + 8), mods=f'offen offset:{32 * t}')
            self.emit(g)
            return None
        S1, S2 = V_T, V_T + 1
        for q in range(8):
            g('v_dot2_f32_bf16', v(S1), v(V_RES + q), s(S_K11), v(S1) if q else 0)
            g('v_dot2_f32_bf16', v(S2), v(V_RES + q), v(V_RES + q), v(S2) if q else 0)
        g('v_permlane32_swap_b32', v(S1), v(S2))
        g('v_add_f32', v(S1), v(S1), v(S2))
        self.emit(g, bg, spacing=48, stop=400)
        return self.alt_stores(self.g, [('buffer_store_dwordx4', v(N + 4 * t, 4), v(V_L16), SRD(S_WS), s(S_T + 8), f'offen offset:{1024 * t}') for t in range(2)]
                               + [('buffer_store_dword', v(S1), v(V_ST), SRD(S_WS), s(S_T + 10), 'offen')])

    def phase_wo(self, L):
        g = self.g
        bases = [S_WA, S_WB]
        for atb in range(2):
            self.tb_base(g, bases[atb], 32 * 1024, LB(L) + o_O, atb)
            g('s_lshl_b32', s(S_T + 8), s(S_W), 13)
            g('s_add_u32', s(bases[atb]), s(bases[atb]), s(S_T + 8))
        self.red_addr(g)
        self.poll(L, T_O, S_RB, 16)
        self.stamp(f'ook{L}')
        OF = V_BIG
        order = [(atb, i) for atb in range(2) for i in range(8)]
        go, to = self.fgroups([(v(OF + (atb * 8 + i) * 4, 4), bases[atb], 1024 * i) for atb, i in order], sc1=True, pool='C')
        PRE = 10
        self.put(g, go[:PRE])
        extra = self.wtake('wgu_q', 10 if L == 0 else 4)
        for n, (atb, i) in enumerate(order):
            g.wait(to[n], self.tw['o', 0, i], self.tw['o', 1, i])
            for afb in range(2):
                self.mfma(g, V_ACC + 16 * (2 * afb + atb), v(192 + (afb * 8 + i) * 4, 4), v(OF + (atb * 8 + i) * 4, 4), 0 if i == 0 else None)
                if afb == 0:
                    if n + PRE < 16:
                        g.L += go[n + PRE]
                    elif extra:
                        g.L += extra.pop(0)
        self.put(g, extra)
        if L == 0:
            g.wait(self.tres)
        self.stamp(f'womm{L}')
        ts = self.reduce_epilogue(L, LB(L) + o_X1, LB(L) + o_ST1, False, bg=self.wtake('wgu_q', 8 if L == 0 else 3))
        self.publish(L, T_X1, S_RB, S_J, ts, post=self.wtake('wgu_q', 8 if L == 0 else 4))
        if L == 0:
            self.put(g, self.wtake('wgu_q', 6))
        self.stamp(f'x1pub{L}')

    def phase_gu(self, L):
        g = self.g
        S_DM, S_H = S_WB, 78
        g('s_lshl_b32', s(S_DM), s(S_W), 2)
        g('s_min_u32', s(S_DM), s(S_DM), 10)
        g('s_lshl_b32', s(S_DM), s(S_DM), 10)
        g('s_mul_i32', s(S_WA), s(S_RB), 4 * 28 * 1024)
        g('s_add_u32', s(S_WA), s(S_WA), s(S_DM))
        g('s_add_u32', s(S_WA), s(S_WA), hex(LB(L) + o_X1))
        g('s_add_u32', s(S_DM), s(S_DM), hex(L_RING))
        g('s_mul_i32', s(S_H), s(S_RB), 4 * 112 * 1024)
        g('s_lshl_b32', s(S_T + 8), s(S_J), 2)
        g('s_add_u32', s(S_T + 8), s(S_T + 8), s(S_W))
        g('s_lshl_b32', s(S_T + 8), s(S_T + 8), 11)
        g('s_add_u32', s(S_H), s(S_H), s(S_T + 8))
        g('s_add_u32', s(S_H), s(S_H), hex(LB(L) + o_H))
        self.poll(L, T_X1, S_RB, 14)
        self.stamp(f'x1ok{L}')
        tdma = {}

        def dma(h):
            grps = []
            tdma[h] = []
            for k in range(4):
                st = Stream()
                if k == 0:
                    t = self.stmp('C')
                    st('s_add_u32', s(t), s(S_WA), hex(h * 14336))
                    st('s_add_u32', 'm0', s(S_DM), hex((h % 4) * 14336))
                tdma[h].append(st('buffer_load_dwordx4', v(V_L16), SRD(S_WS), s(t), mods=f'offen offset:{1024 * k} sc1 lds'))
                grps.append(st.L)
            return grps

        self.put(g, dma(0))
        ST = 24
        tst = self.stat_loads(g, ST, LB(L) + o_ST1)
        self.put(g, dma(1))
        rest = self.wtake('wgu_q', 100)
        self.put(g, rest[:4])
        rest = rest[4:]
        pend = dma(2) + dma(3)
        g.wait(tdma[0])
        g('s_barrier')
        self.stamp(f'gust{L}')
        sx = Stream()
        sx.wait(tst)
        for k in range(1, 7):
            sx('v_add_f32', v(ST), v(ST), v(ST + 2 * k))
            sx('v_add_f32', v(ST + 1), v(ST + 1), v(ST + 2 * k + 1))
        T = 40
        self.ln_finish(sx, ST, ST + 1, T)
        C = 32
        k1 = -2.0 * math.sqrt(2.0 / math.pi) * LOG2E
        sx('v_mul_f32', v(C), fbits(k1), v(T + 2))
        sx('v_mul_f32', v(C + 1), v(T + 2), v(T + 2))
        sx('v_mul_f32', v(C + 1), v(C + 1), v(C))
        sx('v_mul_f32', v(C + 1), fbits(0.044715), v(C + 1))
        sx('v_mul_f32', v(C + 2), v(T + 3), v(T + 3))
        sx('v_mov_b32', v(C + 3), 0)
        sx('v_mov_b32', v(T + 2), 0)
        sx('v_mov_b32', v(T + 3), 0)
        sx('s_lshl_b32', s(S_T + 8), s(S_W), 11)
        sx('s_add_u32', s(S_T + 8), s(S_T + 8), hex(L_STG))
        sx('v_add_u32', v(V_T), s(S_T + 8), v(V_L16))
        tsx = [sx('ds_write_b128', v(V_T), v(T, 4)), sx('ds_write_b128', v(V_T), v(C, 4), mods='offset:1024')]

        BR = 48
        KC = [40, 44]
        HP = [24, 32]
        GT = V_T
        steps = [(tb, t) for tb in range(4) for t in range(29)]

        def baddr(tb, t):
            if t == 28:
                return L_STG + tb * 2048
            h = tb * 2 + t // 14
            return L_RING + (h % 4) * 14336 + (t % 14) * 1024

        def gelu(tb):
            st = Stream()
            G0 = V_ACC + 32 * (tb % 2)
            U0 = G0 + 16
            K = KC[tb % 2]
            tk = self.dsr(st, v(K, 4), L_STG + tb * 2048 + 1024)
            st.wait(tk)
            for r0 in range(0, 16, 4):
                rr = range(r0, r0 + 4)
                for r in rr:
                    st('v_mul_f32', v(GT + r % 4), v(G0 + r), v(G0 + r))
                for r in rr:
                    st('v_fma_f32', v(GT + r % 4), v(GT + r % 4), v(K + 1), v(K))
                for r in rr:
                    st('v_mul_f32', v(GT + r % 4), v(GT + r % 4), v(G0 + r))
                for r in rr:
                    st('v_exp_f32', v(GT + r % 4), v(GT + r % 4))
                for r in rr:
                    st('v_mul_f32', v(U0 + r), v(U0 + r), v(G0 + r))
                for r in rr:
                    st('v_fma_f32', v(GT + r % 4), v(GT + r % 4), v(K + 2), v(K + 2))
                for r in rr:
                    st('v_rcp_f32', v(GT + r % 4), v(GT + r % 4))
                for r in rr:
                    st('v_mul_f32', v(U0 + r), v(U0 + r), v(GT + r % 4))
                for q in (r0 // 2, r0 // 2 + 1):
                    st('v_cvt_pk_bf16_f32', v(HP[tb % 2] + q), v(U0 + 2 * q), v(U0 + 2 * q + 1))
            return st

        ths = []

        def hstore(tb):
            t = self.stmp()
            g('s_add_u32', s(t), s(S_H), hex(tb * 112 * 1024))
            ths.extend(self.alt_stores(g, [('buffer_store_dwordx4', v(HP[tb % 2] + 4 * k, 4), v(V_L16), SRD(S_WS), s(t), f'offen offset:{1024 * k}') for k in range(2)]))

        self.twdn = {}
        dn_items = []
        for i0 in range(0, 28, 4):
            for afb in range(2):
                for i in range(i0, i0 + 4):
                    dn_items.append((i, afb))
        early = [x for x in dn_items if 2 * x[0] + x[1] < 38]
        late = sorted([x for x in dn_items if 2 * x[0] + x[1] >= 38], key=lambda x: 2 * x[0] + x[1])
        ge, te = self.fgroups([(self.wdn_reg(i, afb), S_BWDN1 if afb else S_BWDN, i * 1024) for i, afb in early], pool='B')
        gl, tl = self.fgroups([(self.wdn_reg(i, afb), S_BWDN1 if afb else S_BWDN, i * 1024) for i, afb in late], pool='E')
        for k, t in zip(early + late, te + tl):
            self.twdn[k] = t
        rb_ = {}
        D = 3
        for n in range(D):
            rb_[n] = self.dsr(g, v(BR + 4 * (n % 4), 4), baddr(*steps[n]))
        side = []
        nlate = 0
        for n, (tb, t) in enumerate(steps):
            G0 = V_ACC + 32 * (tb % 2)
            if t == 2:
                side = list(gelu(tb - 1).L) if tb > 0 else list(sx.L)
            wt = [rb_[n]]
            if tb == 0:
                wt += [self.tw['g', 0, t], self.tw['g', 1, t]]
            g.wait(wt)
            B = v(BR + 4 * (n % 4), 4)
            self.mfma(g, G0, a(4 * t, 4), B, 0 if t == 0 else None)

            def take(k):
                c = 0
                while side and c < k:
                    ins = side.pop(0)
                    g.L.append(ins)
                    c += 2 if ins.kind == 'trans' else (0 if ins.kind == 'wait' else 1)
            take(4)
            if rest:
                g.L += rest.pop(0)
            self.mfma(g, G0 + 16, a(116 + 4 * t, 4), B, 0 if t == 0 else None)
            if t in (10, 24):
                h = tb * 2 + (t // 14)
                if h + 1 < 8:
                    assert not (h == 1 and side)
                    g.wait(tdma[h + 1], tsx if h == 1 else None)
                    g('s_barrier')
                    if h >= 1 and h + 3 < 8:
                        assert not pend
                        pend = dma(h + 3)
            if n + D < len(steps):
                rb_[n + D] = self.dsr(g, v(BR + 4 * ((n + D) % 4), 4), baddr(*steps[n + D]))
            take(3)
            if t == 27 and tb > 0:
                assert not side, len(side)
                hstore(tb - 1)
            elif rest and n % 2 == 0:
                g.L += rest.pop(0)
            elif pend:
                g.L += pend.pop(0)
            elif tb == 3 and gl and nlate < t:
                g.L += gl.pop(0)
                nlate += 1
            elif ge and (n % 2 == 1 or tb >= 2):
                g.L += ge.pop(0)
        assert not ge and not gl and not pend, (len(ge), len(gl))
        self.stamp(f'gumm{L}')
        g.ext(gelu(3))
        hstore(3)
        self.publish(L, T_H, S_RB, S_J, ths)
        self.stamp(f'hpub{L}')

    def phase_dn(self, L):
        g = self.g
        bases = [S_WA, S_WB]
        for atb in range(2):
            self.tb_base(g, bases[atb], 112 * 1024, LB(L) + o_H, atb)
            g('s_mul_i32', s(S_T + 8), s(S_W), 28 * 1024)
            g('s_add_u32', s(bases[atb]), s(bases[atb]), s(S_T + 8))
        self.red_addr(g)
        self.poll(L, T_H, S_RB, 14)
        self.stamp(f'hok{L}')
        order = [(atb, i) for atb in range(2) for i in range(28)]
        NB = 24
        hreg = lambda n: a(136 + 4 * (n % NB), 4)
        gh, th = self.fgroups([(hreg(n), bases[atb], i * 1024) for n, (atb, i) in enumerate(order)], sc1=True, pool='C')
        PRE = 12
        self.put(g, gh[:PRE])
        final = (L == 1)
        if not final:
            self.wq_reset()
        for n, (atb, i) in enumerate(order):
            g.wait(th[n], self.twdn[i, 0], self.twdn[i, 1])
            for afb in range(2):
                self.mfma(g, V_ACC + 16 * (2 * afb + atb), self.wdn_reg(i, afb), hreg(n), 0 if i == 0 else None)
                if afb == 0 and n + PRE < len(order):
                    g.L += gh[n + PRE]
        self.stamp(f'dnmm{L}')
        ts = self.reduce_epilogue(L, LB(L) + o_X2, LB(L) + o_ST2, final, bg=() if final else self.wtake('wgu_q', 6))
        if not final:
            self.publish(L, T_X2, S_RB, S_J, ts, post=self.wtake('wgu_q', 4))
        self.stamp(f'x2pub{L}')

    def touch(self, base, nbytes):
        g = self.g
        n = -(-nbytes // 8192)
        g('s_mul_i32', s(S_T + 8), s(S_RB), hex(nbytes))
        g('s_add_u32', s(S_T + 8), s(S_T + 8), hex(base))
        g('s_add_u32', s(S_T + 8), s(S_T + 8), s(S_WA))
        for k in range(0, n, 8):
            g('s_add_u32', s(S_T + 9), s(S_WA), hex(k * 8192))
            g('s_cmp_lt_u32', s(S_T + 9), hex(nbytes))
            g('s_cselect_b32', s(S_T + 9), s(S_T + 8), hex(OOB))
            g('buffer_load_dword', v(40 + (k // 8) % 8), v(V_T + 2), SRD(S_WS), s(S_T + 9), mods='offen')
            g.nocount(1)
            g('s_add_u32', s(S_T + 8), s(S_T + 8), hex(8 * 8192))

    def helper(self, L):
        g = self.g
        if OPT['touch']:
            g('v_lshlrev_b32', v(V_T + 2), 7, v(V_LANE))
            g('s_sub_u32', s(S_WA), s(S_J), 14)
            g('s_lshl_b32', s(S_WA), s(S_WA), 2)
            g('s_add_u32', s(S_WA), s(S_WA), s(S_W))
            g('s_lshl_b32', s(S_WA), s(S_WA), 13)
            self.touch(LB(L) + o_H, 4 * 112 * 1024)
            if L == 0:
                self.poll(0, T_X1, S_RB, 14)
                self.touch(LB(0) + o_X2, 4 * 28 * 1024)
                self.touch(LB(0) + o_ST2, 4 * 14 * 256)
                self.poll(0, T_H, S_RB, 14)
                self.touch(LB(1) + o_O, 4 * 32 * 1024)
                self.touch(LB(1) + o_X1, 4 * 28 * 1024)
                self.touch(LB(1) + o_ST1, 4 * 14 * 256)
            g.raw('  s_waitcnt vmcnt(0)')

    def build(self):
        g = self.g
        self.prologue()
        for L in range(2):
            self.phase_q(L)
            self.phase_o(L)
            g.fence()
            g('s_cmp_ge_u32', s(S_J), 14)
            g('s_cbranch_scc1', f'L_help{L}')
            self.phase_wo(L)
            self.phase_gu(L)
            self.phase_dn(L)
            if L == 0:
                g.fence()
                g.label('L_join0')
                self.poll(0, T_X2, S_RB, 14)
                self.stamp('x2ok')
        g.fence()
        g.label('L_fin')
        if OPT['stamps']:
            g.wait(vm0=True, lg0=True)
            g('s_lshl_b32', s(S_T), 's2', 2)
            g('s_add_u32', s(S_T), s(S_T), s(S_W))
            g('s_lshl_b32', s(S_T), s(S_T), 8)
            g('s_add_u32', s(S_T), s(S_T), hex(TS))
            self.stamp('end')
            g('v_writelane_b32', v(V_TS), s(S_FAST), 62)
            g('v_writelane_b32', v(V_TS), s(S_XCC), 63)
            g('buffer_store_dword', v(V_TS), v(V_L4), SRD(S_WS), s(S_T), mods='offen')
        g.label('L_end')
        g('s_endpgm')
        sv = OPT['stamps']
        OPT['stamps'] = False
        for L in range(2):
            g.label(f'L_help{L}')
            self.helper(L)
            g.fence()
            g('s_branch', 'L_join0' if L == 0 else 'L_fin')
        OPT['stamps'] = sv
        g.label('L_code_end')
        return finalize(g.L)


HEADER = open('cdna_kernels/' + NAME + '.s.ref').read().split('; Override launch')[0]


def emit(path):
    G = Gen()
    L = G.build()
    out = HEADER
    out += f'; @launch grid=(256,1,1) block=(256,1,1) lds={LDS_BYTES}\n'
    out += '.amdgcn_target "amdgcn-amd-amdhsa--gfx950"\n.text\n'
    out += f'.globl {KNAME}\n.p2align 8\n.type {KNAME},@function\n{KNAME}:\n'
    out += '\n'.join(i.text() for i in L) + '\n'
    out += f'''.section .rodata,"a"
.p2align 6
.amdhsa_kernel {KNAME}
  .amdhsa_next_free_vgpr 512
  .amdhsa_next_free_sgpr 102
  .amdhsa_accum_offset 256
  .amdhsa_group_segment_fixed_size 0
  .amdhsa_kernarg_size 88
  .amdhsa_user_sgpr_count 2
  .amdhsa_user_sgpr_kernarg_segment_ptr 1
  .amdhsa_system_sgpr_workgroup_id_x 1
.end_amdhsa_kernel
'''
    open(path, 'w').write(out)
    return G, L


if __name__ == '__main__':
    import argparse, json
    ap = argparse.ArgumentParser()
    ap.add_argument('-o', default='cdna_kernels/' + NAME + '.s')
    ap.add_argument('--stamps', action='store_true')
    ap.add_argument('--slow', action='store_true')
    ap.add_argument('--notouch', action='store_true')
    A = ap.parse_args()
    OPT.update(stamps=A.stamps, force_slow=A.slow, touch=not A.notouch)
    G, L = emit(A.o)
    from collections import Counter
    c = Counter(i.kind for i in L)
    print(len(L), dict(c))
    json.dump(dict(stamps=G.stamp_names, WO=WO_, WGU=WGU, WDN=WDN, LB0=LB0, LSZ=LSZ, o_KVP=o_KVP, o_O=o_O, o_X1=o_X1, o_ST1=o_ST1,
                   o_H=o_H, o_X2=o_X2, o_ST2=o_ST2, TS=TS, WS_USED=WS_USED), open(A.o + '.json', 'w'))
```
